```python
import torch

def _softmax(x, axis=-1):
    return torch.softmax(x, dim=axis)
def _gelu(x):
    return torch.nn.functional.gelu(x, approximate="tanh")
def _silu(x):
    return torch.nn.functional.silu(x)
def _sigmoid(x):
    return torch.sigmoid(x)
def _layernorm(x, axis=-1, eps=1e-5):
    m = x.mean(dim=axis, keepdim=True)
    v = x.var(dim=axis, keepdim=True, unbiased=False)
    return (x - m) / torch.sqrt(v + eps)
def _scatter_add(tgt, idx, src, axis=0):
    return tgt.clone().index_add_(axis, idx, src)
def _segment_sum(src, seg, n):
    out = torch.zeros((n,) + src.shape[1:], dtype=src.dtype)
    return out.index_add_(0, seg, src)
def _pad(x, pw):
    flat = tuple(v for pair in reversed(pw) for v in pair)
    return torch.nn.functional.pad(x, flat)

kernel_name = 'standalone__molecular_angular_gemnet__graph'

def setup_inputs():

    _w = (lambda a: (lambda t: t.to(torch.bfloat16) if t.is_floating_point() else t)(torch.as_tensor(a)))
    N, deg, De, L = 12500, 32, 16, 3
    E = N * deg
    T = E * deg
    NR = 8
    dist = torch.rand(E).to(float)
    angle = (torch.rand(T) * torch.pi).to(float)
    centers = torch.linspace(0.0, 1.0, NR).to(float)
    ang_freq = torch.arange(1, L + 1).to(float)
    return {
        "m": _w((lambda *s: torch.randn(*s, dtype=torch.bfloat16) * 0.05)(E, De)),
        "idx_in": _w((lambda lo, hi, *s: torch.randint(lo, hi, s))(0, E, T).to(torch.int64)),
        "idx_out": _w((lambda lo, hi, *s: torch.randint(lo, hi, s))(0, E, T).to(torch.int64)),
        "dist": _w(dist),
        "angle": _w(angle),
        "centers": _w(centers),
        "ang_freq": _w(ang_freq),
        "w_rbf": _w((lambda *s: torch.randn(*s, dtype=torch.bfloat16) * 0.2)(NR, De)),
        "w_sbf": _w((lambda *s: torch.randn(*s, dtype=torch.bfloat16) * 0.2)(NR * L, De)),
        "w_down": _w((lambda *s: torch.randn(*s, dtype=torch.bfloat16) * 0.2)(De, De)),
        "w_up": _w((lambda *s: torch.randn(*s, dtype=torch.bfloat16) * 0.2)(De, De)),
    }

def reference(m, idx_in, idx_out, dist, angle, centers, ang_freq, w_rbf, w_sbf, w_down, w_up):
    E, De = m.shape[0], m.shape[1]
    NR = centers.shape[0]
    L = ang_freq.shape[0]
    rbf = torch.exp(-10.0 * (dist[:, None] - centers[None, :]) ** 2)
    cbf = torch.cos(ang_freq[None, :] * angle[:, None])
    rbf_t = rbf[idx_out]
    sbf = torch.reshape(rbf_t[:, :, None] * cbf[:, None, :], (-1, NR * L))
    x = (m[idx_in] @ w_down) * (sbf @ w_sbf)
    agg = _segment_sum(x, idx_out, E)
    return m + (agg @ w_up) * (rbf @ w_rbf)
```

```python
class Asm:
    def __init__(self):
        self.lines = []
        self.uid = 0
    def e(self, s):
        for l in s.split("\n"):
            l = l.strip()
            if l: self.lines.append(("    " + l) if not l.endswith(":") else l)
    def c(self, s):
        self.lines.append("    ; " + s)
    def label(self, base):
        self.uid += 1
        return f"{base}_{self.uid}"
    def text(self):
        return "\n".join(self.lines) + "\n"

def vr(a, n=1):
    return f"v{a}" if n == 1 else f"v[{a}:{a+n-1}]"
def sr(a, n=1):
    return f"s{a}" if n == 1 else f"s[{a}:{a+n-1}]"
def ar(a, n=1):
    return f"a{a}" if n == 1 else f"a[{a}:{a+n-1}]"

E = 400000
T = 12800000
TS = 25000
NTILE = 512
BS = 1563
NBK = 256
OFFS_OFF = 80 << 20
M_B = 2747900
M_S = 42949

def srd(a, s, base, nbytes):
    a.e(f"s_mov_b32 s{s}, s{base}")
    a.e(f"s_and_b32 s{s+1}, s{base+1}, 0xffff")
    a.e(f"s_mov_b32 s{s+2}, {nbytes}")
    a.e(f"s_mov_b32 s{s+3}, 0x20000")
```

```python
from common import *

CNT0, CNT1, WSUM, ABASE = 0, 4096, 8192, 8448
BBASE = ABASE + TS*4
P1_LDS = BBASE + TS*2
NQ = 7
LASTQ = TS//4 - 6*1024
NPI = 13
LASTP = TS//2 - 12*1024

def gen_p1(a, name, opt):
    QB = 24
    O = lambda j: QB + 10*j
    I = lambda j: QB + 10*j + 4
    G = lambda j: QB + 10*j + 8
    RK = lambda j: 94 + 4*j
    T0 = 12
    S_IN, S_OUT, S_ANG, S_REC, S_OFF = 8, 12, 16, 20, 24
    sM1, sM2, sNeg, sB, sTile, sTI, sTA, sTR, sWave = 32, 33, 34, 35, 36, 37, 38, 39, 40
    sT0, sT1, sT2 = 41, 42, 43
    ntflag = " nt" if opt.get("p1_nt") else ""
    a.e(f".p2align 8\n.type {name},@function\n{name}:")
    a.e(f"s_cmp_ge_u32 s2, {NTILE//2}\ns_cbranch_scc1 P1_END")
    a.e("s_load_dwordx4 s[4:7], s[0:1], 8")
    a.e("s_load_dwordx2 s[28:29], s[0:1], 32")
    a.e("s_load_dwordx2 s[30:31], s[0:1], 104")
    a.e("v_lshlrev_b32 v1, 4, v0\nv_lshlrev_b32 v2, 3, v0")
    a.e("v_bfrev_b32 v11, 1")
    a.e(f"v_cmp_gt_u32 vcc, {LASTQ}, v0")
    a.e(f"s_mov_b32 s{sM1}, {M_B}\ns_mov_b32 s{sM2}, {M_S}\ns_mov_b32 s{sNeg}, {-BS}\ns_mov_b32 s{sB}, {BBASE}")
    a.e("v_cndmask_b32 v3, v11, v1, vcc\nv_cndmask_b32 v4, v11, v2, vcc")
    a.e("v_mov_b32 v5, 1\nv_lshlrev_b32 v6, 2, v0\nv_mul_u32_u24 v7, 12, v0")
    a.e(f"v_cmp_gt_u32 vcc, {LASTP}, v0\nv_lshlrev_b32 v9, 10, v0\ns_nop 0\nv_cndmask_b32 v8, v11, v7, vcc")
    a.e(f"v_cmp_eq_u32 vcc, 1023, v0\nv_mov_b32 v12, {1024*1024}\ns_nop 0\nv_cndmask_b32 v10, v11, v12, vcc")
    a.e(f"v_lshrrev_b32 v12, 6, v0\ns_nop 0\nv_readfirstlane_b32 s{sWave}, v12")
    a.e("v_mov_b32 v13, 0\nds_write_b32 v6, v13 offset:%d\nds_write_b32 v6, v13 offset:%d" % (CNT0, CNT1))
    a.e("s_waitcnt lgkmcnt(0)")
    srd(a, S_IN, 4, T*4); srd(a, S_OUT, 6, T*4); srd(a, S_ANG, 28, T*2); srd(a, S_REC, 30, NTILE*TS*6)
    a.e(f"s_add_u32 s30, s30, {OFFS_OFF}\ns_addc_u32 s31, s31, 0")
    srd(a, S_OFF, 30, 1025*512*2)
    a.e("s_barrier")

    def set_tile(expr_add):
        a.e(f"s_add_u32 s{sTile}, s2, {expr_add}")
        a.e(f"s_mul_i32 s{sTI}, s{sTile}, {TS*4}\ns_mul_i32 s{sTA}, s{sTile}, {TS*2}")
    def issue_quad(j):
        vo = "v1" if j < 6 else "v3"; va = "v2" if j < 6 else "v4"
        a.e(f"s_add_u32 s{sT0}, s{sTI}, {j*16384}\ns_add_u32 s{sT1}, s{sTA}, {j*8192}")
        a.e(f"buffer_load_dwordx4 {vr(O(j),4)}, {vo}, s[{S_OUT}:{S_OUT+3}], s{sT0} offen{ntflag}")
        a.e(f"buffer_load_dwordx4 {vr(I(j),4)}, {vo}, s[{S_IN}:{S_IN+3}], s{sT0} offen{ntflag}")
        a.e(f"buffer_load_dwordx2 {vr(G(j),2)}, {va}, s[{S_ANG}:{S_ANG+3}], s{sT1} offen{ntflag}")

    def guard_last(begin):
        if begin:
            lab = a.label("P1_SKIPQ"); guard_last.lab = lab
            a.e(f"v_cmp_gt_u32 vcc, {LASTQ}, v0\ns_and_saveexec_b64 s[44:45], vcc\ns_cbranch_execz {lab}")
        else:
            a.e(f"{guard_last.lab}:\ns_mov_b64 exec, s[44:45]")

    def convert(j, cnt, younger):
        a.e(f"s_waitcnt vmcnt({younger})")
        if j == 6: guard_last(True)
        t = T0
        for k in range(4):
            o, i = O(j)+k, I(j)+k
            a.e(f"v_mul_hi_u32_u24 v{t}, s{sM1}, v{o}")
            a.e(f"v_mul_hi_u32_u24 v{t+1}, s{sM2}, v{i}")
            a.e(f"v_mad_i32_i24 v{t+2}, v{t}, s{sNeg}, v{o}")
            a.e(f"v_lshl_add_u32 v{t+1}, v{t+1}, 8, v{t}")
            a.e(f"v_and_b32 v{t+3}, 15, v{t+2}")
            a.e(f"v_lshlrev_b32 v{o}, 2, v{t+1}")
            a.e(f"v_lshl_or_b32 v{t+3}, v{i}, 5, v{t+3}")
            a.e(f"v_lshrrev_b32 v{t+2}, 4, v{t+2}")
            a.e(f"ds_add_rtn_u32 v{RK(j)+k}, v{o}, v5 offset:{cnt}")
            a.e(f"v_lshl_or_b32 v{i}, v{t+2}, 24, v{t+3}")
        if j == 6: guard_last(False)

    def prefix(cnt):
        x, cc, y, w = T0, T0+1, T0+2, T0+3
        a.e("s_waitcnt lgkmcnt(0)\ns_barrier")
        a.e(f"ds_read_b32 v{cc}, v6 offset:{cnt}")
        a.e(f"v_lshrrev_b32 v{w}, 4, v0\nv_and_b32 v{w}, 0xfc, v{w}")
        a.e(f"s_waitcnt lgkmcnt(0)\nv_mov_b32 v{x}, v{cc}")
        for sh in (1, 2, 4, 8):
            a.e(f"s_nop 1\nv_add_u32_dpp v{x}, v{x}, v{x} row_shr:{sh} row_mask:0xf bank_mask:0xf")
        a.e(f"s_nop 1\nv_add_u32_dpp v{x}, v{x}, v{x} row_bcast:15 row_mask:0xa bank_mask:0xf")
        a.e(f"s_nop 1\nv_add_u32_dpp v{x}, v{x}, v{x} row_bcast:31 row_mask:0xc bank_mask:0xf")
        a.e(f"s_mov_b32 exec_lo, 0\ns_brev_b32 exec_hi, 1")
        a.e(f"ds_write_b32 v{w}, v{x} offset:{WSUM}")
        a.e("s_mov_b64 exec, -1")
        a.e("s_waitcnt lgkmcnt(0)\ns_barrier")
        a.e(f"v_and_b32 v{y}, 15, v0\nv_lshlrev_b32 v{y}, 2, v{y}\nds_read_b32 v{y}, v{y} offset:{WSUM}")
        a.e(f"s_waitcnt lgkmcnt(0)\nv_mov_b32 v{w}, v{y}")
        for sh in (1, 2, 4, 8):
            a.e(f"s_nop 1\nv_add_u32_dpp v{w}, v{w}, v{w} row_shr:{sh} row_mask:0xf bank_mask:0xf")
        a.e(f"v_sub_u32 v{w}, v{w}, v{y}\ns_nop 0\nv_readlane_b32 s{sT2}, v{w}, s{sWave}")
        a.e(f"v_sub_u32 v{y}, v{x}, v{cc}\ns_nop 1\nv_add_u32 v{y}, s{sT2}, v{y}")
        a.e(f"v_add_u32 v{x}, s{sT2}, v{x}")
        a.e(f"ds_write_b32 v6, v{y} offset:{cnt}")
        a.e(f"s_lshl_b32 s{sT0}, s{sTile}, 1")
        a.e(f"buffer_store_short v{y}, v9, s[{S_OFF}:{S_OFF+3}], s{sT0} offen")
        a.e(f"buffer_store_short v{x}, v10, s[{S_OFF}:{S_OFF+3}], s{sT0} offen")
        a.e("s_waitcnt lgkmcnt(0)\ns_barrier")

    def scatter(cnt, next_loads):
        st = lambda j: T0 + 4*(j & 1)
        tmp = T0 + 8
        def reads(j):
            if j == 6: guard_last(True)
            for k in range(4):
                a.e(f"ds_read_b32 v{st(j)+k}, v{O(j)+k} offset:{cnt}")
            if j == 6: guard_last(False)
        reads(0)
        for j in range(NQ):
            if j+1 < NQ:
                reads(j+1)
                a.e("s_waitcnt lgkmcnt(4)" if j+1 < 6 else "s_waitcnt lgkmcnt(0)")
            else:
                a.e("s_waitcnt lgkmcnt(0)")
            if j == 6: guard_last(True)
            for k in range(4):
                p = st(j)+k
                a.e(f"v_add_u32 v{p}, v{p}, v{RK(j)+k}")
                a.e(f"v_lshlrev_b32 v{tmp}, 2, v{p}")
                a.e(f"v_lshl_add_u32 v{tmp+1}, v{p}, 1, s{sB}")
                a.e(f"ds_write_b32 v{tmp}, v{I(j)+k} offset:{ABASE}")
                g = G(j) + (k >> 1)
                a.e(f"ds_write_b16{'_d16_hi' if (k & 1) else ''} v{tmp+1}, v{g}")
            if j == 6: guard_last(False)
            if next_loads: issue_quad(j)
        a.e("s_waitcnt lgkmcnt(0)\ns_barrier")

    def copyout():
        tr = lambda q: 94 + 4*q
        av, bv = T0, T0+1
        a.e(f"v_lshlrev_b32 v{av}, 3, v0\nv_add_u32 v{av}, {ABASE}, v{av}")
        a.e(f"v_add_u32 v{bv}, s{sB}, v6")
        it = 0
        while it < NPI:
            n = min(7, NPI-it)
            for q in range(n):
                i2 = it+q
                if i2*8192 > 65535-8:
                    a.e(f"v_add_u32 v{T0+2}, {i2*8192}, v{av}")
                    a.e(f"ds_read_b64 {vr(tr(q),2)}, v{T0+2}")
                else:
                    a.e(f"ds_read_b64 {vr(tr(q),2)}, v{av} offset:{i2*8192}")
                a.e(f"ds_read_b32 v{tr(q)+2}, v{bv} offset:{i2*4096}")
            for q in range(n):
                i2 = it+q
                a.e(f"s_waitcnt lgkmcnt({2*(n-1-q)})")
                a.e(f"s_add_u32 s{sT0}, s{sTR}, {i2*12288}")
                vo = "v7" if i2 < NPI-1 else "v8"
                a.e(f"buffer_store_dwordx3 {vr(tr(q),3)}, {vo}, s[{S_REC}:{S_REC+3}], s{sT0} offen")
            it += n
            if it < NPI:
                a.e("s_nop 1")
    set_tile(0)
    for j in range(NQ): issue_quad(j)
    for j in range(NQ): convert(j, CNT0, 3*(6-j))
    prefix(CNT0)
    a.e(f"s_mul_i32 s{sTR}, s{sTile}, {TS*6}")
    a.e(f"s_mov_b32 s46, s{sTR}")
    set_tile(NTILE//2)
    scatter(CNT0, True)
    a.e(f"s_mov_b32 s{sTR}, s46")
    copyout()
    for j in range(NQ): convert(j, CNT1, 3*(6-j) + NPI)
    prefix(CNT1)
    scatter(CNT1, False)
    a.e(f"s_mul_i32 s{sTR}, s{sTile}, {TS*6}")
    copyout()
    a.e("P1_END:\ns_endpgm")

def kd(name, vgpr, sgpr, accum):
    return f""".amdhsa_kernel {name}
  .amdhsa_next_free_vgpr {vgpr}
  .amdhsa_next_free_sgpr {sgpr}
  .amdhsa_accum_offset {accum}
  .amdhsa_group_segment_fixed_size 0
  .amdhsa_kernarg_size 112
  .amdhsa_user_sgpr_count 2
  .amdhsa_user_sgpr_kernarg_segment_ptr 1
  .amdhsa_system_sgpr_workgroup_id_x 1
  .amdhsa_float_denorm_mode_32 3
  .amdhsa_float_denorm_mode_16_64 3
.end_amdhsa_kernel
"""
```

```python
from common import *
from p1 import kd

NW = 16
NT = 98
FIFO = 0
WORDS = 98*512
FLAGS = WORDS + 512
DESC = 51200
EBASE = DESC + 2048*4 + 256
ESTR = 320

def gen_p2(a, name, opt):
    D = opt.get("D", 5)
    TPW = (NT + NW - 1)//NW
    RING = EBASE + NW*1024
    LDS = RING + NW*D*1024
    assert LDS <= 163840, LDS
    RHOMAX = DESC + 2048*4
    vSig8, vLn8, vHalf16, vAtr, vE0, vZ0, vC4, vFA, vEw = range(9)
    vB, vS, vE, vRho, v2L15 = 9, 10, 11, 12, 13
    BUF = [14, 18]; vDum = 17
    SIDE = [21+j for j in range(D)]
    T = 26 if D <= 5 else None
    assert D <= 5
    A4 = T; Bl = [T+4, T+8, T+12]; a0, a1 = T+16, T+17
    NV = 44
    sW = 3
    S_M, S_REC, S_X, S_OUT = 8, 12, 16, 20
    PA = [28, 32]; PB = [30, 34]
    sEven = 36
    sMask, sSelA, sSelB, sF2, sBB, sFirst = 38, 39, 40, 41, 42, 43
    sTile = [44+j for j in range(D)]
    sBase = [50+j for j in range(D)]
    sM, sTk, sBt, sNg = 56, 57, 58, 59
    sTkP = 60
    sOwn = 62
    sTmp = 64
    sW4, sRing, sRhoMax, sM0 = 70, 71, 72, 73
    sNv = [74+j for j in range(D)]
    sWS = 80
    e = a.e

    e(f".p2align 8\n.type {name},@function\n{name}:")
    e(f"s_cmp_ge_u32 s2, {NBK}\ns_cbranch_scc1 P2_END")
    e("s_load_dwordx2 s[4:5], s[0:1], 0")
    e("s_load_dwordx2 s[6:7], s[0:1], 88")
    e(f"s_load_dwordx2 s[{sWS}:{sWS+1}], s[0:1], 104")
    e("s_load_dwordx2 s[82:83], s[0:1], 48")
    e(f"s_and_b32 s64, s2, 7\ns_lshl_b32 s64, s64, 5\ns_lshr_b32 s65, s2, 3\ns_add_u32 s64, s64, s65")
    e(f"s_mul_i32 s{sBB}, s64, {BS}")
    e(f"s_lshl_b32 s66, s64, 10")
    t = T
    e(f"v_lshrrev_b32 v{t}, 6, v0\ns_nop 0\nv_readfirstlane_b32 s{sW}, v{t}")
    e("s_waitcnt lgkmcnt(0)")
    e("s_load_dwordx2 s[84:85], s[82:83], 0")
    srd(a, S_M, 4, E*32); srd(a, S_OUT, 6, E*32); srd(a, S_REC, sWS, NTILE*TS*6)
    e(f"s_add_u32 s86, s{sWS}, {OFFS_OFF}\ns_addc_u32 s87, s{sWS+1}, 0")
    srd(a, S_X, 86, 1025*512*2)
    e(f"v_lshrrev_b32 v{t}, 9, v0\nv_lshlrev_b32 v{t}, 18, v{t}\nv_and_b32 v{t+1}, 511, v0\nv_lshl_or_b32 v{t}, v{t+1}, 1, v{t}")
    e(f"s_add_u32 s67, s66, {2*256*1024}")
    e(f"buffer_load_ushort v{t+2}, v{t}, s[{S_X}:{S_X+3}], s66 offen")
    e(f"buffer_load_ushort v{t+3}, v{t}, s[{S_X}:{S_X+3}], s66 offen offset:1024")
    e(f"buffer_load_ushort v{t+4}, v{t}, s[{S_X}:{S_X+3}], s67 offen")
    e(f"buffer_load_ushort v{t+5}, v{t}, s[{S_X}:{S_X+3}], s67 offen offset:1024")
    e(f"v_lshlrev_b32 v{t+6}, 2, v0")
    e(f"v_mov_b32 v{t+7}, {64<<16}\nv_mov_b32 v{t+8}, 0")
    e(f"v_cmp_gt_u32 vcc, 128, v0\ns_and_saveexec_b64 s[68:69], vcc")
    e(f"ds_write_b32 v{t+6}, v{t+7} offset:{WORDS}")
    e(f"s_mov_b64 exec, s[68:69]")
    e(f"v_cmp_gt_u32 vcc, 2, v0\ns_and_saveexec_b64 s[68:69], vcc")
    e(f"ds_write_b32 v{t+6}, v{t+8} offset:{FLAGS}")
    e(f"ds_write_b32 v{t+6}, v{t+8} offset:{RHOMAX}")
    e(f"s_mov_b64 exec, s[68:69]")
    e(f"v_mov_b32 v{t+10}, 0\nv_mov_b32 v{t+11}, 0\nv_mov_b32 v{t+12}, 0\nv_mov_b32 v{t+13}, 0")
    e(f"v_lshlrev_b32 v{t+9}, 4, v0\nds_write_b128 v{t+9}, v[{t+10}:{t+13}] offset:{EBASE}")
    e("s_waitcnt vmcnt(0)")
    e(f"v_lshl_or_b32 v{t+2}, v{t+3}, 16, v{t+2}\nv_lshl_or_b32 v{t+4}, v{t+5}, 16, v{t+4}")
    e(f"ds_write_b32 v{t+6}, v{t+2} offset:{DESC}\nds_write_b32 v{t+6}, v{t+4} offset:{DESC+4096}")
    for i in range(TPW*12): e(f"v_accvgpr_write_b32 a{i}, 0")
    e(f"s_mov_b32 s{sEven}, 0x55555555\ns_mov_b32 s{sEven+1}, 0x55555555")
    e(f"s_mov_b32 s{sMask}, 0x00ffffe0\ns_mov_b32 s{sSelA}, 0x05040100\ns_mov_b32 s{sSelB}, 0x07060100")
    e(f"s_mov_b32 s{sRhoMax}, {RHOMAX}\ns_lshl_b32 s{sW4}, s{sW}, 2")
    e(f"s_mul_i32 s{sRing}, s{sW}, {D*1024}\ns_add_u32 s{sRing}, s{sRing}, {RING}")
    extra = NT - (TPW-1)*NW
    e(f"s_cmp_lt_u32 s{sW}, {extra}\ns_cselect_b32 s{sOwn}, {(1<<TPW)-1}, {(1<<(TPW-1))-1}\ns_mov_b32 s{sOwn+1}, 0")
    e(f"s_mov_b32 s{sFirst}, {D}")
    L = t; g = t+1; r = t+2; c = t+3; x = t+4; y = t+5
    e(f"v_and_b32 v{L}, 63, v0")
    e(f"v_lshrrev_b32 v{g}, 4, v{L}\nv_bfe_u32 v{r}, v{L}, 2, 2\nv_and_b32 v{c}, 3, v{L}")
    e(f"v_add_u32 v{x}, s{sW4}, v{g}\nv_lshlrev_b32 v{x}, 2, v{x}\nv_add_u32 v{vRho}, {DESC}, v{x}")
    e(f"v_and_b32 v{x}, 15, v{L}\nv_lshlrev_b32 v{v2L15}, 1, v{x}")
    e(f"v_mov_b32 v{vB}, 0\nv_mov_b32 v{vS}, 0\nv_mov_b32 v{vE}, 0")
    e(f"v_lshrrev_b32 v{x}, 1, v{L}\nv_lshlrev_b32 v{vLn8}, 3, v{x}")
    e(f"v_lshrrev_b32 v{y}, 4, v{x}\nv_lshlrev_b32 v{y}, 4, v{y}")
    e(f"v_bfe_u32 v{vSig8}, v{x}, 2, 1\nv_lshl_add_u32 v{y}, v{vSig8}, 3, v{y}")
    e(f"v_and_b32 v{vSig8}, 3, v{x}\nv_lshl_add_u32 v{y}, v{vSig8}, 1, v{y}")
    e(f"v_bfe_u32 v{vSig8}, v{x}, 3, 1\nv_add_u32 v{y}, v{y}, v{vSig8}")
    e(f"v_lshlrev_b32 v{vSig8}, 3, v{y}")
    e(f"v_and_b32 v{y}, 1, v{L}\nv_lshlrev_b32 v{vHalf16}, 4, v{y}")
    e(f"s_lshl_b32 s64, s{sW}, 10\ns_add_u32 s64, s64, {EBASE}")
    e(f"v_mul_u32_u24 v{vEw}, {ESTR}, v{y}\nv_add3_u32 v{vEw}, v{vEw}, v{vLn8}, s64")
    e("s_waitcnt lgkmcnt(0)")
    e(f"s_lshl_b32 s65, s84, 16\ns_and_b32 s66, s84, 0xffff0000\ns_lshl_b32 s{sF2}, s85, 16")
    e(f"v_cmp_eq_u32 vcc, 1, v{y}\nv_mov_b32 v{vFA}, s65\nv_mov_b32 v{x}, s66\nv_cndmask_b32 v{vFA}, v{vFA}, v{x}, vcc")
    e(f"v_lshrrev_b32 v{x}, 1, v{g}\nv_lshlrev_b32 v{x}, 4, v{x}\nv_and_b32 v{y}, 1, v{g}\nv_lshl_add_u32 v{x}, v{y}, 2, v{x}\nv_add_u32 v{x}, v{x}, v{r}")
    e(f"v_lshlrev_b32 v{x}, 5, v{x}\nv_lshl_add_u32 v{x}, v{c}, 3, v{x}\nv_add_u32 v{vAtr}, s{sRing}, v{x}")
    e(f"v_lshlrev_b32 v{x}, 6, v{g}\nv_lshl_add_u32 v{x}, v{r}, 4, v{x}\nv_add_u32 v{vE0}, s64, v{x}")
    e(f"s_add_u32 s64, s64, 264\nv_mov_b32 v{vZ0}, s64\nv_lshlrev_b32 v{vC4}, 2, v{c}")
    e("s_waitcnt lgkmcnt(0)\ns_barrier")

    def advance_issue(X):
        d = BUF[X]; tD = t+8
        e(f"v_add_u32 v{t}, 32, v{vB}\nv_cmp_lt_u32 s[{sTmp}:{sTmp+1}], v{t}, v{vE}")
        e(f"v_and_b32 v{t+1}, 0x7fc, v{vRho}\nv_mul_u32_u24 v{t+1}, 6250, v{t+1}")
        e(f"v_add_u32_sdwa v{t+2}, v{t+1}, v{tD} dst_sel:DWORD dst_unused:UNUSED_PAD src0_sel:DWORD src1_sel:WORD_0")
        e(f"v_add_u32_sdwa v{t+3}, v{t+1}, v{tD} dst_sel:DWORD dst_unused:UNUSED_PAD src0_sel:DWORD src1_sel:WORD_1")
        e(f"v_and_b32 v{t+4}, -2, v{t+2}")
        e(f"v_add_u32 v{t+5}, 256, v{vRho}\nv_min_u32 v{t+5}, s{sRhoMax}, v{t+5}")
        m = f"s[{sTmp}:{sTmp+1}]"
        e(f"v_cndmask_b32_e64 v{vB}, v{t+4}, v{t}, {m}")
        e(f"v_cndmask_b32_e64 v{vS}, v{t+2}, v{vS}, {m}")
        e(f"v_cndmask_b32_e64 v{vE}, v{t+3}, v{vE}, {m}")
        e(f"v_cndmask_b32_e64 v{vRho}, v{t+5}, v{vRho}, {m}")
        e(f"v_add_u32 v{t}, v{vB}, v{v2L15}\nv_mul_u32_u24 v{t+2}, 6, v{t}\nv_sub_u32 v{t}, v{t}, v{vS}\nv_sub_u32 v{t+1}, v{vE}, v{vS}")
        e(f"v_cmp_lt_u32_e64 s[{PA[X]}:{PA[X]+1}], v{t}, v{t+1}")
        e(f"v_add_u32 v{t}, 1, v{t}")
        e(f"v_cmp_lt_u32_e64 s[{PB[X]}:{PB[X]+1}], v{t}, v{t+1}")
        e(f"s_or_b64 s[{sTmp}:{sTmp+1}], s[{PA[X]}:{PA[X]+1}], s[{PB[X]}:{PB[X]+1}]")
        e(f"v_cndmask_b32_e64 v{t+2}, -16, v{t+2}, s[{sTmp}:{sTmp+1}]")
        e(f"buffer_load_dwordx3 v[{d}:{d+2}], v{t+2}, s[{S_REC}:{S_REC+3}], 0 offen")

    for X in (0, 1):
        e(f"ds_read_b32 v{t+8}, v{vRho}\ns_waitcnt lgkmcnt(0)")
        advance_issue(X)
    e("s_waitcnt vmcnt(1)")

    def stage_I(X, p):
        d = BUF[X]
        pa = f"s[{PA[X]}:{PA[X]+1}]"; pb = f"s[{PB[X]}:{PB[X]+1}]"
        tD, one, tA, tB_, oA, oB, wA, wB = t+8, t+9, t+10, t+11, t+12, t+13, t+14, t+15
        e(f"ds_read_b32 v{tD}, v{vRho}")
        e(f"v_mov_b32 v{one}, 1")
        e(f"s_mov_b64 exec, {pa}")
        e(f"v_lshlrev_b32_sdwa v{tA}, 2, v{d} dst_sel:DWORD dst_unused:UNUSED_PAD src0_sel:DWORD src1_sel:BYTE_3")
        e(f"ds_add_rtn_u32 v{oA}, v{tA}, v{one} offset:{WORDS}")
        e(f"s_mov_b64 exec, {pb}")
        e(f"v_lshlrev_b32_sdwa v{tB_}, 2, v{d+1} dst_sel:DWORD dst_unused:UNUSED_PAD src0_sel:DWORD src1_sel:BYTE_3")
        e(f"ds_add_rtn_u32 v{oB}, v{tB_}, v{one} offset:{WORDS}")
        e("s_mov_b64 exec, -1")
        e(f"v_perm_b32 v{wA}, v{d+2}, v{d}, s{sSelA}\nv_perm_b32 v{wB}, v{d+2}, v{d+1}, s{sSelB}")
        e(f"v_lshlrev_b32 v{tA}, 7, v{tA}\nv_lshlrev_b32 v{tB_}, 7, v{tB_}")
        e("s_waitcnt lgkmcnt(0)")
        for (pm, o_, tb, dd, w1) in ((pa, oA, tA, d, wA), (pb, oB, tB_, d+1, wB)):
            e(f"s_mov_b64 exec, {pm}")
            e(f"v_cmp_lt_u32_sdwa vcc, v{o_}, v{o_} src0_sel:WORD_0 src1_sel:WORD_1")
            e(f"s_andn2_b64 {pm}, {pm}, vcc\ns_mov_b64 exec, vcc")
            e(f"v_and_b32 v{o_}, 63, v{o_}\nv_lshl_add_u32 v{o_}, v{o_}, 3, v{tb}")
            e(f"ds_write2_b32 v{o_}, v{dd}, v{w1} offset0:0 offset1:1")
        e("s_mov_b64 exec, -1")
        lr, ld = a.label("RETRY"), a.label("ISSUED")
        e(f"s_or_b64 s[{sTmp}:{sTmp+1}], {pa}, {pb}\ns_cbranch_scc1 {lr}")
        advance_issue(X)
        e(f"s_branch {ld}\n{lr}:")
        e(f"v_mov_b32 v{t}, -16\nbuffer_load_dword v{vDum}, v{t}, s[{S_REC}:{S_REC+3}], 0 offen")
        e(f"{ld}:")
        e(f"v_add_u32 v{t}, 32, v{vB}\nv_cmp_lt_u32 vcc, v{t}, v{vE}")
        e(f"v_cmp_gt_u32_e64 s[{sTmp}:{sTmp+1}], s{sRhoMax}, v{vRho}")
        e(f"s_or_b64 vcc, vcc, s[{sTmp}:{sTmp+1}]")
        e(f"s_or_b64 s[{sTmp}:{sTmp+1}], s[{PA[0]}:{PA[0]+1}], s[{PB[0]}:{PB[0]+1}]\ns_or_b64 vcc, vcc, s[{sTmp}:{sTmp+1}]")
        e(f"s_or_b64 s[{sTmp}:{sTmp+1}], s[{PA[1]}:{PA[1]+1}], s[{PB[1]}:{PB[1]+1}]\ns_or_b64 exec, vcc, s[{sTmp}:{sTmp+1}]")
        e(f"v_mov_b32 v{t}, {FLAGS+4*p}\nds_write_b32 v{t}, v{one}")
        e("s_mov_b64 exec, -1")

    def stage_M(flush):
        qmask = 0x1c if flush else 0xc
        for j in range(D):
            skip = a.label("MSKIP")
            S = SIDE[j]
            e(f"s_cmp_gt_u32 s{sFirst}, {j}\ns_cbranch_scc1 {skip}")
            c0, c1, c2 = Bl[0], Bl[0]+1, Bl[0]+2
            x0, x1 = Bl[1], Bl[1]+1
            eA, eB = Bl[2], Bl[2]+2
            e(f"v_and_b32 v{c0}, 0xffff0000, v{S}")
            e(f"v_mul_f32 v{c1}, v{vFA}, v{c0}\nv_mul_f32 v{c2}, s{sF2}, v{c0}")
            e(f"v_cvt_pk_bf16_f32 v{c1}, v{c1}, v{c2}")
            e(f"v_and_b32 v{a0}, {qmask}, v{S}")
            e(f"v_lshlrev_b32 v{c2}, 16, v{c1}\nv_and_b32 v{c1}, 0xffff0000, v{c1}")
            e(f"v_mul_f32 v{c2}, 0.15915494, v{c2}\nv_mul_f32 v{c1}, 0.15915494, v{c1}")
            e(f"v_fract_f32 v{c2}, v{c2}\nv_fract_f32 v{c1}, v{c1}")
            e(f"v_cos_f32 v{c2}, v{c2}\nv_cos_f32 v{c1}, v{c1}")
            e(f"v_xor_b32_dpp v{a1}, v{a0}, v{vC4} quad_perm:[2,2,2,2] row_mask:0xf bank_mask:0xf")
            e(f"v_xor_b32_dpp v{a0}, v{a0}, v{vC4} quad_perm:[0,0,0,0] row_mask:0xf bank_mask:0xf")
            e(f"v_lshlrev_b32 v{c0}, 4, v{S}\nv_mov_b32 v{x1}, 0")
            e(f"v_cvt_pk_bf16_f32 v{x0}, v{c2}, 0")
            e(f"v_cmp_eq_u32 vcc, 0, v{a0}")
            e(f"v_lshlrev_b64 v[{eA}:{eA+1}], v{c0}, v[{x0}:{x1}]")
            e(f"v_cvt_pk_bf16_f32 v{x0}, v{c1}, 0")
            e(f"v_cndmask_b32 v{a0}, v{vZ0}, v{vE0}, vcc")
            e(f"v_cmp_eq_u32 vcc, 0, v{a1}")
            e(f"v_lshlrev_b64 v[{eB}:{eB+1}], v{c0}, v[{x0}:{x1}]")
            e(f"ds_write_b64 v{vEw}, v[{eA}:{eA+1}]")
            e(f"v_cndmask_b32 v{a1}, v{vZ0}, v{vE0}, vcc")
            e(f"s_mov_b64 exec, s[{sEven}:{sEven+1}]")
            e(f"ds_write_b64 v{vEw}, v[{eB}:{eB+1}] offset:{2*ESTR}")
            e("s_mov_b64 exec, -1")
            e(f"s_waitcnt vmcnt({(D-j) if not flush else (D-1-j)})")
            e(f"ds_read_b64_tr_b16 v[{A4}:{A4+1}], v{vAtr} offset:{j*1024}")
            e(f"ds_read_b64_tr_b16 v[{A4+2}:{A4+3}], v{vAtr} offset:{j*1024+256}")
            for l in range(3):
                e(f"ds_read_b64_tr_b16 v[{Bl[l]}:{Bl[l]+1}], v{a0} offset:{l*ESTR}")
                e(f"ds_read_b64_tr_b16 v[{Bl[l]+2}:{Bl[l]+3}], v{a1} offset:{l*ESTR+8}")
            e("s_waitcnt lgkmcnt(0)")
            done = a.label("MDONE")
            def leaf(i):
                for l in range(3):
                    ac = 12*i + 4*l
                    e(f"v_mfma_f32_16x16x32_bf16 a[{ac}:{ac+3}], v[{A4}:{A4+3}], v[{Bl[l]}:{Bl[l]+3}], a[{ac}:{ac+3}]")
            def tree(lo, hi, last):
                if hi - lo == 1:
                    leaf(lo)
                    if not last: e(f"s_branch {done}")
                    return
                mid = (lo + hi + 1)//2
                lb = a.label("MT")
                e(f"s_cmp_ge_u32 s{sTile[j]}, {mid}\ns_cbranch_scc1 {lb}")
                tree(lo, mid, False)
                e(f"{lb}:")
                tree(mid, hi, last)
            tree(0, TPW, True)
            e(f"{done}:\n{skip}:")
        if not flush:
            e("s_waitcnt vmcnt(1)")

    def stage_C(p, flush, exit_label=None):
        L_, wad, tW, tF, m_, lim, n64, vb, x2, y2 = (t+i for i in range(10))
        w0 = [t+10+j for j in range(D)]
        e(f"v_mbcnt_lo_u32_b32 v{L_}, -1, 0\nv_mbcnt_hi_u32_b32 v{L_}, -1, v{L_}")
        e(f"v_lshl_add_u32 v{wad}, v{L_}, 6, s{sW4}")
        e(f"s_mov_b64 exec, s[{sOwn}:{sOwn+1}]")
        e(f"ds_read_b32 v{tW}, v{wad} offset:{WORDS}")
        if not flush:
            e(f"v_mov_b32 v{tF}, {FLAGS+4*p}\nds_read_b32 v{tF}, v{tF}")
        e("s_waitcnt lgkmcnt(0)")
        if not flush:
            e(f"v_readfirstlane_b32 s{sTmp}, v{tF}")
            e(f"v_mov_b32 v{x2}, 0\nv_mov_b32 v{y2}, {FLAGS+4*(p^1)}")
            e(f"ds_write_b32 v{y2}, v{x2}")
            e(f"s_cmp_eq_u32 s{sTmp}, 0")
            e("s_cbranch_scc1 " + exit_label)
        e(f"v_min_u32_sdwa v{m_}, v{tW}, v{tW} dst_sel:DWORD dst_unused:UNUSED_PAD src0_sel:WORD_0 src1_sel:WORD_1")
        e(f"v_lshrrev_b32 v{lim}, 16, v{tW}")
        e(f"v_sub_u32 v{n64}, v{m_}, v{lim}")
        e(f"v_lshlrev_b32 v{vb}, 7, v{wad}\nv_lshl_add_u32 v{vb}, v{lim}, 3, v{vb}\nv_add_u32 v{vb}, -512, v{vb}")
        if not flush:
            e(f"v_cmp_le_i32 vcc, -32, v{n64}\ns_mov_b32 s{sM}, vcc_lo")
            e(f"v_cmp_le_i32 vcc, -16, v{n64}\ns_mov_b32 s{sBt}, vcc_lo")
            e(f"s_andn2_b32 s{sM}, s{sM}, s{sBt}\ns_lshl_b32 s{sM}, s{sM}, 8\ns_or_b32 s{sM}, s{sM}, s{sBt}")
        else:
            e(f"v_cmp_lt_i32 vcc, -64, v{n64}\ns_mov_b32 s{sM}, vcc_lo")
            e(f"s_cmp_eq_u32 s{sM}, 0\ns_cbranch_scc1 {exit_label}")
            e(f"v_add_u32 v{m_}, 64, v{n64}\nv_lshlrev_b32 v{m_}, 3, v{m_}")
        e(f"s_bcnt1_i32_b32 s{sNg}, s{sM}\ns_min_u32 s{sNg}, s{sNg}, {D}\ns_sub_u32 s{sFirst}, {D}, s{sNg}")
        e(f"s_mov_b32 s{sTkP}, 0\ns_mov_b32 s{sTkP+1}, 0")
        for j in range(D):
            sk = a.label("PICK")
            e(f"s_cmp_gt_u32 s{sFirst}, {j}\ns_cbranch_scc1 {sk}")
            e(f"s_ff1_i32_b32 s{sBt}, s{sM}\ns_bitset0_b32 s{sM}, s{sBt}\ns_and_b32 s{sTile[j]}, s{sBt}, 7\ns_bitset1_b32 s{sTkP}, s{sTile[j]}")
            e(f"v_readlane_b32 s{sBase[j]}, v{vb}, s{sTile[j]}")
            if flush: e(f"v_readlane_b32 s{sNv[j]}, v{m_}, s{sTile[j]}")
            e(f"{sk}:")
        tk = f"s[{sTkP}:{sTkP+1}]"
        e(f"v_xor_b32 v{x2}, 32, v{lim}\nv_cndmask_b32_e64 v{lim}, v{lim}, v{x2}, {tk}")
        if not flush:
            e(f"v_add_u32 v{x2}, -32, v{n64}")
        else:
            e(f"v_add_u32 v{x2}, -32, v{n64}\nv_max_i32 v{x2}, s79, v{x2}")
        e(f"v_cndmask_b32_e64 v{n64}, v{n64}, v{x2}, {tk}")
        e(f"v_add_u32 v{x2}, v{lim}, v{n64}\nv_lshl_or_b32 v{x2}, v{lim}, 16, v{x2}")
        e(f"ds_write_b32 v{wad}, v{x2} offset:{WORDS}")
        e("s_mov_b64 exec, -1")
        for j in range(D):
            sk = a.label("RD")
            e(f"s_cmp_gt_u32 s{sFirst}, {j}\ns_cbranch_scc1 {sk}")
            e(f"v_add_u32 v{x2}, s{sBase[j]}, v{vSig8}\nv_add_u32 v{y2}, s{sBase[j]}, v{vLn8}")
            e(f"ds_read_b32 v{w0[j]}, v{x2}\nds_read_b32 v{SIDE[j]}, v{y2} offset:4")
            e(f"{sk}:")
        e("s_waitcnt lgkmcnt(0)")
        for j in range(D):
            sk = a.label("DMA")
            e(f"s_cmp_gt_u32 s{sFirst}, {j}\ns_cbranch_scc1 {sk}")
            e(f"s_add_u32 m0, s{sRing}, {j*1024}")
            e(f"v_and_or_b32 v{w0[j]}, v{w0[j]}, s{sMask}, v{vHalf16}")
            if flush:
                e(f"v_cmp_le_u32 vcc, s{sNv[j]}, v{vLn8}\nv_mov_b32 v{x2}, 16\nv_mov_b32 v{y2}, 0\nv_cndmask_b32 v{x2}, v{y2}, v{x2}, vcc\nv_or_b32 v{SIDE[j]}, v{SIDE[j]}, v{x2}")
            e(f"buffer_load_dwordx4 v{w0[j]}, s[{S_M}:{S_M+3}], 0 offen lds")
            e(f"{sk}:")

    e(f"s_mov_b32 s79, -64")
    e("s_mov_b32 s88, 0\ns_mov_b32 s89, 0")
    e("P2_LOOP:")
    MAXS = opt.get("maxsteps", 1 << 22)
    e(f"s_add_u32 s88, s88, 1\ns_cmp_gt_u32 s88, {MAXS}\ns_cbranch_scc1 P2_FLUSH")
    for p in (0, 1):
        stage_I(p, p)
        stage_M(False)
        e("s_waitcnt lgkmcnt(0)\ns_barrier")
        stage_C(p, False, "P2_FLUSH")
        e("s_waitcnt lgkmcnt(0)\ns_barrier")
    e("s_branch P2_LOOP")
    e("P2_FLUSH:")
    e("s_mov_b64 exec, -1\ns_waitcnt vmcnt(0) lgkmcnt(0)")
    e("P2_FLUSH_LOOP:")
    e(f"s_add_u32 s89, s89, 1\ns_cmp_gt_u32 s89, 64\ns_cbranch_scc1 P2_EPI")
    stage_C(0, True, "P2_EPI")
    stage_M(True)
    e("s_branch P2_FLUSH_LOOP")
    e("P2_EPI:")
    e("s_mov_b64 exec, -1")
    if opt.get("dbg"):
        sk = a.label("DBG")
        e(f"s_cmp_lg_u32 s2, 0\ns_cbranch_scc1 {sk}\ns_cmp_lg_u32 s{sW}, 0\ns_cbranch_scc1 {sk}")
        e("s_load_dwordx2 s[90:91], s[0:1], 96\ns_waitcnt lgkmcnt(0)")
        e("v_mov_b32 v26, 0\nv_mov_b32 v27, s88\nv_mov_b32 v28, s89\nglobal_store_dwordx2 v26, v[27:28], s[90:91]".replace("v[27:28]","v[28:29]").replace("v_mov_b32 v27, s88","v_mov_b32 v28, s88").replace("v_mov_b32 v28, s89","v_mov_b32 v29, s89"))
        e(f"{sk}:")
    gen_epilogue(a, opt, TPW, extra, sW, sBB, S_M, S_OUT, S_X)
    e("P2_END:\ns_endpgm")
    launch = f"; @launch kernel={name} grid=({NBK},1,1) block=({NW*64},1,1) lds={LDS}"
    return launch, kd(name, NV + TPW*12, 96, NV)

def gen_epilogue(a, opt, TPW, extra, sW, sBB, S_M, S_OUT, S_X):
    e = a.e
    WD, WU, WS0, WR, CA, CB = 0, 2, 4, 10, 12, 13
    vN, vG8 = 14, 15
    RB = 16; G = 18; A = 22; AG = 26; BP = 30; TM = 32
    MC, DC = 36, 38
    DN, MN = 39, 40
    OF, OF2 = 42, 43
    L, g, i16, x, y = 26, 27, 28, 29, 30
    e("s_load_dwordx2 s[44:45], s[0:1], 24\ns_load_dwordx2 s[46:47], s[0:1], 40")
    e("s_load_dwordx4 s[48:51], s[0:1], 56\ns_load_dwordx4 s[52:55], s[0:1], 72")
    e(f"v_mbcnt_lo_u32_b32 v{L}, -1, 0\nv_mbcnt_hi_u32_b32 v{L}, -1, v{L}")
    e(f"v_lshrrev_b32 v{g}, 4, v{L}\nv_and_b32 v{i16}, 15, v{L}")
    e("s_waitcnt lgkmcnt(0)")
    def ldw(base, nbytes, loads):
        srd(a, S_X, base, nbytes)
        for dst, off, imm in loads:
            e(f"buffer_load_ushort v{dst}, v{off}, s[{S_X}:{S_X+3}], 0 offen offset:{imm}")
    e(f"v_lshlrev_b32 v{x}, 7, v{g}\nv_lshl_add_u32 v{x}, v{i16}, 1, v{x}")
    ldw(52, 512, [(32+j, x, j*32) for j in range(4)])
    ldw(54, 512, [(36+j, x, j*32) for j in range(4)])
    e("s_waitcnt vmcnt(0)")
    e(f"v_lshl_or_b32 v{WD}, v33, 16, v32\nv_lshl_or_b32 v{WD+1}, v35, 16, v34")
    e(f"v_lshl_or_b32 v{WU}, v37, 16, v36\nv_lshl_or_b32 v{WU+1}, v39, 16, v38")
    e(f"v_mul_u32_u24 v{x}, 192, v{g}\nv_lshl_add_u32 v{x}, v{i16}, 1, v{x}")
    ldw(50, 24*32, [(32+2*l+h, x, l*32 + 96*h) for l in range(3) for h in range(2)])
    e(f"v_lshlrev_b32 v{y}, 6, v{g}\nv_lshl_add_u32 v{y}, v{i16}, 1, v{y}")
    ldw(48, 8*32, [(38, y, 0), (39, y, 32)])
    e(f"v_lshlrev_b32 v{x}, 2, v{g}")
    ldw(46, 16, [(40, x, 0), (41, x, 2)])
    e("s_waitcnt vmcnt(0)")
    for l in range(3):
        e(f"v_lshl_or_b32 v{WS0+2*l}, v{33+2*l}, 16, v{32+2*l}\nv_mov_b32 v{WS0+2*l+1}, 0")
    e(f"v_lshl_or_b32 v{WR}, v39, 16, v38\nv_mov_b32 v{WR+1}, 0")
    e(f"v_lshlrev_b32 v{CA}, 16, v40\nv_lshlrev_b32 v{CB}, 16, v41")
    e(f"v_mov_b32 v{vN}, v{i16}\nv_lshlrev_b32 v{vG8}, 3, v{g}\nv_mov_b32 v{RB+1}, 0")
    srd(a, S_X, 44, E*2)
    def issue(i, md, dd):
        e(f"s_lshl_b32 s60, s{sW}, 4\ns_add_u32 s60, s60, {i*256}")
        e(f"v_add_u32 v{OF}, s60, v{vN}")
        e(f"v_cmp_gt_u32 vcc, {BS}, v{OF}")
        e(f"v_add_u32 v{OF}, s{sBB}, v{OF}")
        e(f"v_lshlrev_b32 v{OF2}, 1, v{OF}\nv_lshl_add_u32 v{OF}, v{OF}, 5, v{vG8}")
        e(f"v_cndmask_b32_e64 v{OF2}, -16, v{OF2}, vcc\nv_cndmask_b32_e64 v{OF}, -16, v{OF}, vcc")
        e(f"buffer_load_ushort v{dd}, v{OF2}, s[{S_X}:{S_X+3}], 0 offen")
        e(f"buffer_load_dwordx2 v[{md}:{md+1}], v{OF}, s[{S_M}:{S_M+3}], 0 offen")
    for i in range(TPW):
        skip = a.label("ESKIP")
        if i == TPW-1:
            e(f"s_cmp_ge_u32 s{sW}, {extra}\ns_cbranch_scc1 {skip}")
        issue(i, MC, DC)
        e("s_waitcnt vmcnt(0)")
        x0, x1, p = TM, TM+1, TM+2
        e(f"v_lshlrev_b32 v{p}, 16, v{DC}\nv_sub_f32 v{x0}, v{p}, v{CA}\nv_sub_f32 v{x1}, v{p}, v{CB}")
        def rnd():
            e(f"v_cvt_pk_bf16_f32 v{p}, v{x0}, v{x1}\nv_lshlrev_b32 v{x0}, 16, v{p}\nv_and_b32 v{x1}, 0xffff0000, v{p}")
        rnd()
        e(f"v_mul_f32 v{x0}, v{x0}, v{x0}\nv_mul_f32 v{x1}, v{x1}, v{x1}"); rnd()
        e(f"v_mul_f32 v{x0}, 0xc1200000, v{x0}\nv_mul_f32 v{x1}, 0xc1200000, v{x1}"); rnd()
        e(f"v_mul_f32 v{x0}, 0x3fb8aa3b, v{x0}\nv_mul_f32 v{x1}, 0x3fb8aa3b, v{x1}")
        e(f"v_exp_f32 v{x0}, v{x0}\nv_exp_f32 v{x1}, v{x1}\ns_nop 0")
        e(f"v_cvt_pk_bf16_f32 v{RB}, v{x0}, v{x1}")
        for l in range(3):
            ac = 12*i + 4*l
            for k in range(4): e(f"v_accvgpr_read_b32 v{TM+k}, a{ac+k}")
            e(f"v_cvt_pk_bf16_f32 v{BP}, v{TM}, v{TM+1}\nv_cvt_pk_bf16_f32 v{BP+1}, v{TM+2}, v{TM+3}")
            e("s_nop 1")
            e(f"v_mfma_f32_16x16x16_bf16 v[{G}:{G+3}], v[{WS0+2*l}:{WS0+2*l+1}], v[{RB}:{RB+1}], 0")
            e(f"v_mfma_f32_16x16x16_bf16 v[{A}:{A+3}], v[{WD}:{WD+1}], v[{BP}:{BP+1}], 0")
            e("s_nop 7\ns_nop 1")
            for k in range(4):
                if l == 0: e(f"v_mul_f32 v{AG+k}, v{G+k}, v{A+k}")
                else: e(f"v_fmac_f32 v{AG+k}, v{G+k}, v{A+k}")
        e(f"v_cvt_pk_bf16_f32 v{BP}, v{AG}, v{AG+1}\nv_cvt_pk_bf16_f32 v{BP+1}, v{AG+2}, v{AG+3}")
        e("s_nop 1")
        e(f"v_mfma_f32_16x16x16_bf16 v[{G}:{G+3}], v[{WU}:{WU+1}], v[{BP}:{BP+1}], 0")
        e(f"v_mfma_f32_16x16x16_bf16 v[{A}:{A+3}], v[{WR}:{WR+1}], v[{RB}:{RB+1}], 0")
        e(f"v_lshlrev_b32 v{TM}, 16, v{MC}\nv_and_b32 v{TM+1}, 0xffff0000, v{MC}\nv_lshlrev_b32 v{TM+2}, 16, v{MC+1}\nv_and_b32 v{TM+3}, 0xffff0000, v{MC+1}")
        e("s_nop 7")
        for k in range(4): e(f"v_fmac_f32 v{TM+k}, v{G+k}, v{A+k}")
        e(f"v_cvt_pk_bf16_f32 v{BP}, v{TM}, v{TM+1}\nv_cvt_pk_bf16_f32 v{BP+1}, v{TM+2}, v{TM+3}")
        e(f"buffer_store_dwordx2 v[{BP}:{BP+1}], v{OF}, s[{S_OUT}:{S_OUT+3}], 0 offen")
        e(f"{skip}:")
```

```python
import sys
from common import *
import p1
opt = {}
for x in sys.argv[2:]:
    k, _, v = x.partition("=")
    opt[k] = int(v) if v else 1
HEAD = open("standalone__molecular_angular_gemnet__graph.s.ref").read().split("; Override launch geometry")[0]
a = Asm()
launch = [f"; @launch kernel=gemnet_part_kernel grid=(256,1,1) block=(1024,1,1) lds={p1.P1_LDS}"]
MAIN = "standalone__molecular_angular_gemnet__graph_kernel"
kds = []
a.e(".globl gemnet_part_kernel")
p1.gen_p1(a, "gemnet_part_kernel", opt)
kds.append(p1.kd("gemnet_part_kernel", 128, 100 if (opt.get("p1prof") or opt.get("rt2")) else 80, 128))
if not opt.get("p1only"):
    import importlib; p2 = importlib.import_module({1:"p2",2:"p2b",3:"p2c",4:"p2d",5:"p2e",6:"p2f",7:"p2g"}[opt.get("v", 6)])
    a.e(f".globl {MAIN}")
    l, k = p2.gen_p2(a, MAIN, opt)
    launch.append(l); kds.append(k)
out = HEAD + "\n".join(launch) + "\n" + '.amdgcn_target "amdgcn-amd-amdhsa--gfx950"\n.text\n' + a.text() + '.section .rodata,"a"\n' + "".join(".p2align 6\n" + k for k in kds)
open(sys.argv[1], "w").write(out)
print("wrote", sys.argv[1], len(out), "bytes")
```

```python
from common import *

CNT0, CNT1, WSUM, ABASE = 0, 4096, 8192, 8448
BBASE = ABASE + TS*4
P1_LDS = BBASE + TS*2
NQ = 7
LASTQ = TS//4 - 6*1024
NPI = 13
LASTP = TS//2 - 12*1024

def gen_p1(a, name, opt):
    S8 = opt.get('S', 8) == 8
    NBIN = 2048 if S8 else 1024
    MS = 85899 if S8 else M_S
    QB = 24
    O = lambda j: QB + 10*j
    I = lambda j: QB + 10*j + 4
    G = lambda j: QB + 10*j + 8
    RK = lambda j: 94 + 4*j
    T0 = 12
    S_IN, S_OUT, S_ANG, S_REC, S_OFF = 8, 12, 16, 20, 24
    sM1, sM2, sNeg, sB, sTile, sTI, sTA, sTR, sWave = 32, 33, 34, 35, 36, 37, 38, 39, 40
    sT0, sT1, sT2 = 41, 42, 43
    ntflag = " nt" if opt.get("p1_nt") else ""
    a.e(f".p2align 8\n.type {name},@function\n{name}:")
    a.e(f"s_cmp_ge_u32 s2, {NTILE//2}\ns_cbranch_scc1 P1_END")
    a.e("s_load_dwordx4 s[4:7], s[0:1], 8")
    a.e("s_load_dwordx2 s[28:29], s[0:1], 32")
    a.e("s_load_dwordx2 s[30:31], s[0:1], 104")
    a.e("v_lshlrev_b32 v1, 4, v0\nv_lshlrev_b32 v2, 3, v0")
    a.e("v_bfrev_b32 v11, 1")
    a.e(f"v_cmp_gt_u32 vcc, {LASTQ}, v0")
    a.e(f"s_mov_b32 s{sM1}, {M_B}\ns_mov_b32 s{sM2}, {MS}\ns_mov_b32 s{sNeg}, {-BS}\ns_mov_b32 s{sB}, {BBASE}")
    a.e("v_cndmask_b32 v3, v11, v1, vcc\nv_cndmask_b32 v4, v11, v2, vcc")
    a.e("v_mov_b32 v5, 1\nv_lshlrev_b32 v6, 2, v0\nv_mul_u32_u24 v7, 12, v0")
    a.e(f"v_cmp_gt_u32 vcc, {LASTP}, v0\nv_lshlrev_b32 v9, {11 if S8 else 10}, v0\ns_nop 0\nv_cndmask_b32 v8, v11, v7, vcc")
    a.e(f"v_cmp_eq_u32 vcc, 1023, v0\nv_mov_b32 v12, {NBIN*1024}\ns_nop 0\nv_cndmask_b32 v10, v11, v12, vcc")
    a.e(f"v_lshrrev_b32 v12, 6, v0\ns_nop 0\nv_readfirstlane_b32 s{sWave}, v12")
    a.e("v_mov_b32 v13, 0\nds_write_b32 v6, v13 offset:%d\nds_write_b32 v6, v13 offset:%d" % (CNT0, CNT1))
    a.e("s_waitcnt lgkmcnt(0)")
    srd(a, S_IN, 4, T*4); srd(a, S_OUT, 6, T*4); srd(a, S_ANG, 28, T*2); srd(a, S_REC, 30, NTILE*TS*6)
    a.e(f"s_add_u32 s30, s30, {OFFS_OFF}\ns_addc_u32 s31, s31, 0")
    srd(a, S_OFF, 30, (NBIN+1)*512*2)
    a.e("s_barrier")

    def set_tile(expr_add):
        a.e(f"s_add_u32 s{sTile}, s2, {expr_add}")
        a.e(f"s_mul_i32 s{sTI}, s{sTile}, {TS*4}\ns_mul_i32 s{sTA}, s{sTile}, {TS*2}")
    def issue_quad(j):
        vo = "v1" if j < 6 else "v3"; va = "v2" if j < 6 else "v4"
        a.e(f"s_add_u32 s{sT0}, s{sTI}, {j*16384}\ns_add_u32 s{sT1}, s{sTA}, {j*8192}")
        a.e(f"buffer_load_dwordx4 {vr(O(j),4)}, {vo}, s[{S_OUT}:{S_OUT+3}], s{sT0} offen{ntflag}")
        a.e(f"buffer_load_dwordx4 {vr(I(j),4)}, {vo}, s[{S_IN}:{S_IN+3}], s{sT0} offen{ntflag}")
        a.e(f"buffer_load_dwordx2 {vr(G(j),2)}, {va}, s[{S_ANG}:{S_ANG+3}], s{sT1} offen{ntflag}")

    def guard_last(begin):
        if begin:
            lab = a.label("P1_SKIPQ"); guard_last.lab = lab
            a.e(f"v_cmp_gt_u32 vcc, {LASTQ}, v0\ns_and_saveexec_b64 s[44:45], vcc\ns_cbranch_execz {lab}")
        else:
            a.e(f"{guard_last.lab}:\ns_mov_b64 exec, s[44:45]")

    def convert(j, cnt, younger):
        a.e(f"s_waitcnt vmcnt({younger})")
        if j == 6: guard_last(True)
        t = T0
        for k in range(4):
            o, i = O(j)+k, I(j)+k
            a.e(f"v_mul_hi_u32_u24 v{t}, s{sM1}, v{o}")
            a.e(f"v_mul_hi_u32_u24 v{t+1}, s{sM2}, v{i}")
            a.e(f"v_mad_i32_i24 v{t+2}, v{t}, s{sNeg}, v{o}")
            a.e(f"v_lshl_add_u32 v{t+1}, v{t+1}, 8, v{t}")
            a.e(f"v_and_b32 v{t+3}, 15, v{t+2}")
            a.e(f"v_lshlrev_b32 v{o}, 2, v{t+1}")
            a.e(f"v_lshl_or_b32 v{t+3}, v{i}, 5, v{t+3}")
            a.e(f"v_lshrrev_b32 v{t+2}, 4, v{t+2}")
            a.e(f"ds_add_rtn_u32 v{RK(j)+k}, v{o}, v5 offset:{cnt}")
            a.e(f"v_lshl_or_b32 v{i}, v{t+2}, 24, v{t+3}")
        if j == 6: guard_last(False)

    def prefix(cnt):
        x, cc, y, w, c1 = T0, T0+1, T0+2, T0+3, T0+5
        p0, p1_ = T0+4, T0+5
        a.e("s_waitcnt lgkmcnt(0)\ns_barrier")
        if S8:
            a.e(f"v_lshlrev_b32 v{T0+6}, 3, v0\nds_read_b64 v[{p0}:{p1_}], v{T0+6}")
        else:
            a.e(f"ds_read_b32 v{cc}, v6 offset:{cnt}")
        a.e(f"v_lshrrev_b32 v{w}, 4, v0\nv_and_b32 v{w}, 0xfc, v{w}")
        if S8:
            a.e(f"s_waitcnt lgkmcnt(0)\nv_add_u32 v{cc}, v{p0}, v{p1_}\nv_mov_b32 v{x}, v{cc}")
        else:
            a.e(f"s_waitcnt lgkmcnt(0)\nv_mov_b32 v{x}, v{cc}")
        for sh in (1, 2, 4, 8):
            a.e(f"s_nop 1\nv_add_u32_dpp v{x}, v{x}, v{x} row_shr:{sh} row_mask:0xf bank_mask:0xf")
        a.e(f"s_nop 1\nv_add_u32_dpp v{x}, v{x}, v{x} row_bcast:15 row_mask:0xa bank_mask:0xf")
        a.e(f"s_nop 1\nv_add_u32_dpp v{x}, v{x}, v{x} row_bcast:31 row_mask:0xc bank_mask:0xf")
        a.e(f"s_mov_b32 exec_lo, 0\ns_brev_b32 exec_hi, 1")
        a.e(f"ds_write_b32 v{w}, v{x} offset:{WSUM}")
        a.e("s_mov_b64 exec, -1")
        a.e("s_waitcnt lgkmcnt(0)\ns_barrier")
        a.e(f"v_and_b32 v{y}, 15, v0\nv_lshlrev_b32 v{y}, 2, v{y}\nds_read_b32 v{y}, v{y} offset:{WSUM}")
        a.e(f"s_waitcnt lgkmcnt(0)\nv_mov_b32 v{w}, v{y}")
        for sh in (1, 2, 4, 8):
            a.e(f"s_nop 1\nv_add_u32_dpp v{w}, v{w}, v{w} row_shr:{sh} row_mask:0xf bank_mask:0xf")
        a.e(f"v_sub_u32 v{w}, v{w}, v{y}\ns_nop 0\nv_readlane_b32 s{sT2}, v{w}, s{sWave}")
        a.e(f"v_sub_u32 v{y}, v{x}, v{cc}\ns_nop 1\nv_add_u32 v{y}, s{sT2}, v{y}")
        a.e(f"v_add_u32 v{x}, s{sT2}, v{x}")
        a.e(f"s_lshl_b32 s{sT0}, s{sTile}, 1")
        if S8:
            a.e(f"v_add_u32 v{p1_}, v{y}, v{p0}\nv_mov_b32 v{p0}, v{y}")
            a.e(f"ds_write_b64 v{T0+6}, v[{p0}:{p1_}]")
            a.e(f"buffer_store_short v{p0}, v9, s[{S_OFF}:{S_OFF+3}], s{sT0} offen")
            a.e(f"buffer_store_short v{p1_}, v9, s[{S_OFF}:{S_OFF+3}], s{sT0} offen offset:1024")
        else:
            a.e(f"ds_write_b32 v6, v{y} offset:{cnt}")
            a.e(f"buffer_store_short v{y}, v9, s[{S_OFF}:{S_OFF+3}], s{sT0} offen")
        a.e(f"buffer_store_short v{x}, v10, s[{S_OFF}:{S_OFF+3}], s{sT0} offen")
        a.e("s_waitcnt lgkmcnt(0)\ns_barrier")

    def scatter(cnt, next_loads):
        st = lambda j: T0 + 4*(j & 1)
        tmp = T0 + 8
        def reads(j):
            if j == 6: guard_last(True)
            for k in range(4):
                a.e(f"ds_read_b32 v{st(j)+k}, v{O(j)+k} offset:{cnt}")
            if j == 6: guard_last(False)
        reads(0)
        for j in range(NQ):
            if j+1 < NQ:
                reads(j+1)
                a.e("s_waitcnt lgkmcnt(4)" if j+1 < 6 else "s_waitcnt lgkmcnt(0)")
            else:
                a.e("s_waitcnt lgkmcnt(0)")
            if j == 6: guard_last(True)
            for k in range(4):
                p = st(j)+k
                a.e(f"v_add_u32 v{p}, v{p}, v{RK(j)+k}")
                a.e(f"v_lshlrev_b32 v{tmp}, 2, v{p}")
                a.e(f"v_lshl_add_u32 v{tmp+1}, v{p}, 1, s{sB}")
                a.e(f"ds_write_b32 v{tmp}, v{I(j)+k} offset:{ABASE}")
                g = G(j) + (k >> 1)
                a.e(f"ds_write_b16{'_d16_hi' if (k & 1) else ''} v{tmp+1}, v{g}")
            if j == 6: guard_last(False)
            if next_loads: issue_quad(j)
        a.e("s_waitcnt lgkmcnt(0)\ns_barrier")

    def copyout():
        tr = lambda q: 94 + 4*q
        av, bv = T0, T0+1
        a.e(f"v_lshlrev_b32 v{av}, 3, v0\nv_add_u32 v{av}, {ABASE}, v{av}")
        a.e(f"v_add_u32 v{bv}, s{sB}, v6")
        it = 0
        while it < NPI:
            n = min(7, NPI-it)
            for q in range(n):
                i2 = it+q
                if i2*8192 > 65535-8:
                    a.e(f"v_add_u32 v{T0+2}, {i2*8192}, v{av}")
                    a.e(f"ds_read_b64 {vr(tr(q),2)}, v{T0+2}")
                else:
                    a.e(f"ds_read_b64 {vr(tr(q),2)}, v{av} offset:{i2*8192}")
                a.e(f"ds_read_b32 v{tr(q)+2}, v{bv} offset:{i2*4096}")
            for q in range(n):
                i2 = it+q
                a.e(f"s_waitcnt lgkmcnt({2*(n-1-q)})")
                a.e(f"s_add_u32 s{sT0}, s{sTR}, {i2*12288}")
                vo = "v7" if i2 < NPI-1 else "v8"
                a.e(f"buffer_store_dwordx3 {vr(tr(q),3)}, {vo}, s[{S_REC}:{S_REC+3}], s{sT0} offen")
            it += n
            if it < NPI:
                a.e("s_nop 1")
    set_tile(0)
    for j in range(NQ): issue_quad(j)
    for j in range(NQ): convert(j, CNT0, 3*(6-j))
    prefix(CNT0)
    a.e(f"s_mul_i32 s{sTR}, s{sTile}, {TS*6}")
    a.e(f"s_mov_b32 s46, s{sTR}")
    set_tile(NTILE//2)
    scatter(CNT0, True)
    a.e(f"s_mov_b32 s{sTR}, s46")
    C1 = CNT0 if S8 else CNT1
    if S8:
        a.e(f"v_lshlrev_b32 v{T0+6}, 3, v0\nv_mov_b32 v{T0+4}, 0\nv_mov_b32 v{T0+5}, 0\nds_write_b64 v{T0+6}, v[{T0+4}:{T0+5}]")
    copyout()
    if S8: a.e("s_waitcnt lgkmcnt(0)\ns_barrier")
    for j in range(NQ): convert(j, C1, 3*(6-j) + NPI)
    prefix(C1)
    scatter(C1, False)
    a.e(f"s_mul_i32 s{sTR}, s{sTile}, {TS*6}")
    copyout()
    a.e("P1_END:\ns_endpgm")

def kd(name, vgpr, sgpr, accum):
    return f""".amdhsa_kernel {name}
  .amdhsa_next_free_vgpr {vgpr}
  .amdhsa_next_free_sgpr {sgpr}
  .amdhsa_accum_offset {accum}
  .amdhsa_group_segment_fixed_size 0
  .amdhsa_kernarg_size 112
  .amdhsa_user_sgpr_count 2
  .amdhsa_user_sgpr_kernarg_segment_ptr 1
  .amdhsa_system_sgpr_workgroup_id_x 1
  .amdhsa_float_denorm_mode_32 3
  .amdhsa_float_denorm_mode_16_64 3
.end_amdhsa_kernel
"""
```

```python
from common import *

CNT0, CNT1, WSUM, ABASE = 0, 4096, 8192, 8448
BBASE = ABASE + TS*4
P1_LDS = BBASE + TS*2
NQ = 7
LASTQ = TS//4 - 6*1024
NPI = 13
LASTP = TS//2 - 12*1024

def gen_p1(a, name, opt):
    S8 = opt.get('S', 8) == 8
    NBIN = 2048 if S8 else 1024
    MS = 85899 if S8 else M_S
    QB = 24
    O = lambda j: QB + 10*j
    I = lambda j: QB + 10*j + 4
    G = lambda j: QB + 10*j + 8
    RK = lambda j: 94 + 4*j
    T0 = 12
    S_IN, S_OUT, S_ANG, S_REC, S_OFF = 8, 12, 16, 20, 24
    sM1, sM2, sNeg, sB, sTile, sTI, sTA, sTR, sWave = 32, 33, 34, 35, 36, 37, 38, 39, 40
    sT0, sT1, sT2 = 41, 42, 43
    ntflag = " nt" if opt.get("p1_nt") else ""
    a.e(f".p2align 8\n.type {name},@function\n{name}:")
    a.e(f"s_cmp_ge_u32 s2, {NTILE//2}\ns_cbranch_scc1 P1_END")
    if opt.get("rt2"): a.e("s_memrealtime s[54:55]")
    a.e("s_load_dwordx4 s[4:7], s[0:1], 8")
    a.e("s_load_dwordx2 s[28:29], s[0:1], 32")
    a.e("s_load_dwordx2 s[30:31], s[0:1], 104")
    a.e("v_lshlrev_b32 v1, 4, v0\nv_lshlrev_b32 v2, 3, v0")
    a.e("v_bfrev_b32 v11, 1")
    a.e(f"v_cmp_gt_u32 vcc, {LASTQ}, v0")
    a.e(f"s_mov_b32 s{sM1}, {M_B}\ns_mov_b32 s{sM2}, {MS}\ns_mov_b32 s{sNeg}, {-BS}\ns_mov_b32 s{sB}, {BBASE}")
    a.e("v_cndmask_b32 v3, v11, v1, vcc\nv_cndmask_b32 v4, v11, v2, vcc")
    a.e("v_mov_b32 v5, 1\nv_lshlrev_b32 v6, 2, v0\nv_mul_u32_u24 v7, 12, v0")
    a.e(f"v_cmp_gt_u32 vcc, {LASTP}, v0\nv_lshlrev_b32 v9, {11 if S8 else 10}, v0\ns_nop 0\nv_cndmask_b32 v8, v11, v7, vcc")
    a.e(f"v_cmp_eq_u32 vcc, 1023, v0\nv_mov_b32 v12, {NBIN*1024}\ns_nop 0\nv_cndmask_b32 v10, v11, v12, vcc")
    a.e(f"v_lshrrev_b32 v12, 6, v0\ns_nop 0\nv_readfirstlane_b32 s{sWave}, v12")
    a.e("v_mov_b32 v13, 0\nds_write_b32 v6, v13 offset:%d\nds_write_b32 v6, v13 offset:%d" % (CNT0, CNT1))
    a.e("s_waitcnt lgkmcnt(0)")
    srd(a, S_IN, 4, T*4); srd(a, S_OUT, 6, T*4); srd(a, S_ANG, 28, T*2); srd(a, S_REC, 30, NTILE*TS*6)
    a.e(f"s_add_u32 s30, s30, {OFFS_OFF}\ns_addc_u32 s31, s31, 0")
    srd(a, S_OFF, 30, (NBIN+1)*512*2)
    if opt.get("p1_wm"):
        a.e("s_load_dwordx2 s[44:45], s[0:1], 0\ns_waitcnt lgkmcnt(0)")
        srd(a, 48, 44, E*32)
        a.e("s_mul_i32 s46, s2, 391\nv_add_u32 v12, s46, v0\nv_lshlrev_b32 v12, 7, v12")
        a.e("v_cmp_gt_u32 vcc, 391, v0\ns_and_saveexec_b64 s[44:45], vcc\nbuffer_load_dword v13, v12, s[48:51], 0 offen\ns_mov_b64 exec, s[44:45]")
    a.e("s_barrier")

    def set_tile(expr_add):
        a.e(f"s_add_u32 s{sTile}, s2, {expr_add}")
        a.e(f"s_mul_i32 s{sTI}, s{sTile}, {TS*4}\ns_mul_i32 s{sTA}, s{sTile}, {TS*2}")
    V2 = opt.get("p1v", 1) == 2
    sNI, sNA = 47, 52
    def issue_quad(j):
        vo = "v1" if j < 6 else "v3"; va = "v2" if j < 6 else "v4"
        a.e(f"s_add_u32 s{sT0}, s{sTI}, {j*16384}\ns_add_u32 s{sT1}, s{sTA}, {j*8192}")
        a.e(f"buffer_load_dwordx4 {vr(O(j),4)}, {vo}, s[{S_OUT}:{S_OUT+3}], s{sT0} offen{ntflag}")
        a.e(f"buffer_load_dwordx4 {vr(I(j),4)}, {vo}, s[{S_IN}:{S_IN+3}], s{sT0} offen{ntflag}")
        a.e(f"buffer_load_dwordx2 {vr(G(j),2)}, {va}, s[{S_ANG}:{S_ANG+3}], s{sT1} offen{ntflag}")
    def issue_O(j):
        vo = "v1" if j < 6 else "v3"
        a.e(f"s_add_u32 s{sT0}, s{sNI}, {j*16384}")
        a.e(f"buffer_load_dwordx4 {vr(O(j),4)}, {vo}, s[{S_OUT}:{S_OUT+3}], s{sT0} offen{ntflag}")
    def issue_IG(j):
        vo = "v1" if j < 6 else "v3"; va = "v2" if j < 6 else "v4"
        a.e(f"s_add_u32 s{sT0}, s{sNI}, {j*16384}\ns_add_u32 s{sT1}, s{sNA}, {j*8192}")
        a.e(f"buffer_load_dwordx4 {vr(I(j),4)}, {vo}, s[{S_IN}:{S_IN+3}], s{sT0} offen{ntflag}")
        a.e(f"buffer_load_dwordx2 {vr(G(j),2)}, {va}, s[{S_ANG}:{S_ANG+3}], s{sT1} offen{ntflag}")
    def finalize(j, nxt):
        for k in range(4):
            a.e(f"v_lshl_or_b32 v{RK(j)+k}, v{O(j)+k}, 16, v{RK(j)+k}")
        if nxt: issue_O(j)

    def guard_last(begin):
        if begin:
            lab = a.label("P1_SKIPQ"); guard_last.lab = lab
            a.e(f"v_cmp_gt_u32 vcc, {LASTQ}, v0\ns_and_saveexec_b64 s[44:45], vcc\ns_cbranch_execz {lab}")
        else:
            a.e(f"{guard_last.lab}:\ns_mov_b64 exec, s[44:45]")

    def convert(j, cnt, younger, nxt=False):
        a.e(f"s_waitcnt vmcnt({younger})")
        if V2 and j >= 1:
            a.e("s_waitcnt lgkmcnt(0)")
            finalize(j-1, nxt)
        if j == 6: guard_last(True)
        t = T0
        for k in range(4):
            o, i = O(j)+k, I(j)+k
            a.e(f"v_mul_hi_u32_u24 v{t}, s{sM1}, v{o}")
            a.e(f"v_mul_hi_u32_u24 v{t+1}, s{sM2}, v{i}")
            a.e(f"v_mad_i32_i24 v{t+2}, v{t}, s{sNeg}, v{o}")
            a.e(f"v_lshl_add_u32 v{t+1}, v{t+1}, 8, v{t}")
            a.e(f"v_and_b32 v{t+3}, 15, v{t+2}")
            a.e(f"v_lshlrev_b32 v{o}, 2, v{t+1}")
            a.e(f"v_lshl_or_b32 v{t+3}, v{i}, 5, v{t+3}")
            a.e(f"v_lshrrev_b32 v{t+2}, 4, v{t+2}")
            a.e(f"ds_add_rtn_u32 v{RK(j)+k}, v{o}, v5 offset:{cnt}")
            a.e(f"v_lshl_or_b32 v{i}, v{t+2}, 24, v{t+3}")
        if j == 6: guard_last(False)

    def prefix(cnt, first=True):
        x, cc, y, w, c1 = T0, T0+1, T0+2, T0+3, T0+5
        p0, p1_ = T0+4, T0+5
        a.e("s_waitcnt lgkmcnt(0)")
        if V2: finalize(6, first)
        a.e("s_barrier")
        if S8:
            a.e(f"v_lshlrev_b32 v{T0+6}, 3, v0\nds_read_b64 v[{p0}:{p1_}], v{T0+6}")
        else:
            a.e(f"ds_read_b32 v{cc}, v6 offset:{cnt}")
        a.e(f"v_lshrrev_b32 v{w}, 4, v0\nv_and_b32 v{w}, 0xfc, v{w}")
        if S8:
            a.e(f"s_waitcnt lgkmcnt(0)\nv_add_u32 v{cc}, v{p0}, v{p1_}\nv_mov_b32 v{x}, v{cc}")
        else:
            a.e(f"s_waitcnt lgkmcnt(0)\nv_mov_b32 v{x}, v{cc}")
        for sh in (1, 2, 4, 8):
            a.e(f"s_nop 1\nv_add_u32_dpp v{x}, v{x}, v{x} row_shr:{sh} row_mask:0xf bank_mask:0xf")
        a.e(f"s_nop 1\nv_add_u32_dpp v{x}, v{x}, v{x} row_bcast:15 row_mask:0xa bank_mask:0xf")
        a.e(f"s_nop 1\nv_add_u32_dpp v{x}, v{x}, v{x} row_bcast:31 row_mask:0xc bank_mask:0xf")
        a.e(f"s_mov_b32 exec_lo, 0\ns_brev_b32 exec_hi, 1")
        a.e(f"ds_write_b32 v{w}, v{x} offset:{WSUM}")
        a.e("s_mov_b64 exec, -1")
        a.e("s_waitcnt lgkmcnt(0)\ns_barrier")
        a.e(f"v_and_b32 v{y}, 15, v0\nv_lshlrev_b32 v{y}, 2, v{y}\nds_read_b32 v{y}, v{y} offset:{WSUM}")
        a.e(f"s_waitcnt lgkmcnt(0)\nv_mov_b32 v{w}, v{y}")
        for sh in (1, 2, 4, 8):
            a.e(f"s_nop 1\nv_add_u32_dpp v{w}, v{w}, v{w} row_shr:{sh} row_mask:0xf bank_mask:0xf")
        a.e(f"v_sub_u32 v{w}, v{w}, v{y}\ns_nop 0\nv_readlane_b32 s{sT2}, v{w}, s{sWave}")
        a.e(f"v_sub_u32 v{y}, v{x}, v{cc}\ns_nop 1\nv_add_u32 v{y}, s{sT2}, v{y}")
        a.e(f"v_add_u32 v{x}, s{sT2}, v{x}")
        a.e(f"s_lshl_b32 s{sT0}, s{sTile}, 1")
        if S8:
            a.e(f"v_add_u32 v{p1_}, v{y}, v{p0}\nv_mov_b32 v{p0}, v{y}")
            a.e(f"ds_write_b64 v{T0+6}, v[{p0}:{p1_}]")
            v9 = "v11" if opt.get("p1_nooff") else "v9"
            if V2:
                if first:
                    a.e(f"v_mov_b32 v122, v{p0}\nv_mov_b32 v123, v{p1_}\nv_mov_b32 v124, v{x}")
                else:
                    a.e(f"s_lshl_b32 s{sT0}, s2, 2")
                    a.e(f"v_lshl_or_b32 v122, v{p0}, 16, v122\nv_lshl_or_b32 v123, v{p1_}, 16, v123\nv_lshl_or_b32 v124, v{x}, 16, v124")
                    a.e(f"buffer_store_dword v122, {v9}, s[{S_OFF}:{S_OFF+3}], s{sT0} offen")
                    a.e(f"buffer_store_dword v123, {v9}, s[{S_OFF}:{S_OFF+3}], s{sT0} offen offset:1024")
                    a.e(f"buffer_store_dword v124, v10, s[{S_OFF}:{S_OFF+3}], s{sT0} offen")
            else:
                a.e(f"buffer_store_short v{p0}, {v9}, s[{S_OFF}:{S_OFF+3}], s{sT0} offen")
                a.e(f"buffer_store_short v{p1_}, {v9}, s[{S_OFF}:{S_OFF+3}], s{sT0} offen offset:1024")
        else:
            a.e(f"ds_write_b32 v6, v{y} offset:{cnt}")
            a.e(f"buffer_store_short v{y}, v9, s[{S_OFF}:{S_OFF+3}], s{sT0} offen")
        if not V2: a.e(f"buffer_store_short v{x}, v10, s[{S_OFF}:{S_OFF+3}], s{sT0} offen")
        a.e("s_waitcnt lgkmcnt(0)\ns_barrier")

    def scatter(cnt, next_loads):
        st = lambda j: T0 + 4*(j & 1)
        tmp = T0 + 8
        def reads(j):
            if j == 6: guard_last(True)
            for k in range(4):
                if V2:
                    a.e(f"v_lshrrev_b32 v{st(j)+k}, 16, v{RK(j)+k}")
            for k in range(4):
                if V2: a.e(f"ds_read_b32 v{st(j)+k}, v{st(j)+k} offset:{cnt}")
                else: a.e(f"ds_read_b32 v{st(j)+k}, v{O(j)+k} offset:{cnt}")
            if j == 6: guard_last(False)
        reads(0)
        for j in range(NQ):
            if j+1 < NQ:
                reads(j+1)
                a.e("s_waitcnt lgkmcnt(4)" if j+1 < 6 else "s_waitcnt lgkmcnt(0)")
            else:
                a.e("s_waitcnt lgkmcnt(0)")
            if j == 6: guard_last(True)
            for k in range(4):
                p = st(j)+k
                if V2: a.e(f"v_add_u32_sdwa v{p}, v{p}, v{RK(j)+k} dst_sel:DWORD dst_unused:UNUSED_PAD src0_sel:DWORD src1_sel:WORD_0")
                else: a.e(f"v_add_u32 v{p}, v{p}, v{RK(j)+k}")
                a.e(f"v_lshlrev_b32 v{tmp}, 2, v{p}")
                a.e(f"v_lshl_add_u32 v{tmp+1}, v{p}, 1, s{sB}")
                a.e(f"ds_write_b32 v{tmp}, v{I(j)+k} offset:{ABASE}")
                g = G(j) + (k >> 1)
                a.e(f"ds_write_b16{'_d16_hi' if (k & 1) else ''} v{tmp+1}, v{g}")
            if j == 6: guard_last(False)
            if next_loads:
                if V2: issue_IG(j)
                else: issue_quad(j)
        a.e("s_waitcnt lgkmcnt(0)\ns_barrier")

    def copyout():
        tr = lambda q: 94 + 4*q
        av, bv = T0, T0+1
        a.e(f"v_lshlrev_b32 v{av}, 3, v0\nv_add_u32 v{av}, {ABASE}, v{av}")
        a.e(f"v_add_u32 v{bv}, s{sB}, v6")
        it = 0
        while it < NPI:
            n = min(7, NPI-it)
            for q in range(n):
                i2 = it+q
                if i2*8192 > 65535-8:
                    a.e(f"v_add_u32 v{T0+2}, {i2*8192}, v{av}")
                    a.e(f"ds_read_b64 {vr(tr(q),2)}, v{T0+2}")
                else:
                    a.e(f"ds_read_b64 {vr(tr(q),2)}, v{av} offset:{i2*8192}")
                a.e(f"ds_read_b32 v{tr(q)+2}, v{bv} offset:{i2*4096}")
            for q in range(n):
                i2 = it+q
                a.e(f"s_waitcnt lgkmcnt({2*(n-1-q)})")
                a.e(f"s_add_u32 s{sT0}, s{sTR}, {i2*12288}")
                vo = "v7" if i2 < NPI-1 else "v8"
                if opt.get("p1_nost"): vo = "v11"
                a.e(f"buffer_store_dwordx3 {vr(tr(q),3)}, {vo}, s[{S_REC}:{S_REC+3}], s{sT0} offen" + ["", " nt", " sc1", " sc0 sc1", " sc0", " sc1 nt"][opt.get("p1_st", 0)])
            it += n
            if it < NPI:
                a.e("s_nop 1")
    if V2:
        PR = opt.get("p1prof")
        nst = [0]
        def stamp():
            if not PR: return
            k = nst[0]; nst[0] += 1
            a.e(f"s_memtime s[{60+2*k}:{61+2*k}]")
        stamp()
        a.e(f"s_lshl_b32 s{sTile}, s2, 1")
        a.e(f"s_mul_i32 s{sTI}, s{sTile}, {TS*4}\ns_mul_i32 s{sTA}, s{sTile}, {TS*2}")
        a.e(f"s_add_u32 s{sNI}, s{sTI}, {TS*4}\ns_add_u32 s{sNA}, s{sTA}, {TS*2}")
        for j in range(NQ): issue_quad(j)
        stamp()
        for j in range(NQ):
            convert(j, CNT0, 3*(6-j) + max(j-1, 0), True)
            if j == 0: stamp()
        stamp()
        prefix(CNT0, True)
        stamp()
        a.e(f"s_mul_i32 s{sTR}, s{sTile}, {TS*6}")
        scatter(CNT0, True)
        stamp()
        a.e(f"v_lshlrev_b32 v{T0+6}, 3, v0\nv_mov_b32 v{T0+4}, 0\nv_mov_b32 v{T0+5}, 0\nds_write_b64 v{T0+6}, v[{T0+4}:{T0+5}]")
        copyout()
        a.e("s_waitcnt lgkmcnt(0)\ns_barrier")
        stamp()
        for j in range(NQ):
            convert(j, CNT0, 2*(6-j) + NPI, False)
            if j == 0: stamp()
        stamp()
        prefix(CNT0, False)
        stamp()
        scatter(CNT0, False)
        stamp()
        a.e(f"s_add_u32 s{sTR}, s{sTR}, {TS*6}")
        copyout()
        stamp()
        if PR:
            a.e("s_waitcnt vmcnt(0)")
            stamp()
            a.e("s_waitcnt lgkmcnt(0)")
            sk = a.label("P1PR")
            a.e(f"s_and_b32 s58, s2, 63\ns_cmp_lg_u32 s58, 0\ns_cbranch_scc1 {sk}\ns_cmp_lg_u32 s{sWave}, 0\ns_cbranch_scc1 {sk}")
            a.e("s_load_dwordx2 s[58:59], s[0:1], 96\ns_waitcnt lgkmcnt(0)")
            a.e("s_lshr_b32 s57, s2, 6\ns_lshl_b32 s57, s57, 6\nv_mov_b32 v12, s57")
            for k in range(nst[0]):
                a.e(f"s_sub_u32 s56, s{60+2*k}, s60\nv_mov_b32 v13, s56\nglobal_store_dword v12, v13, s[58:59] offset:{4*k}")
            a.e(f"{sk}:")
    else:
        set_tile(0)
        for j in range(NQ): issue_quad(j)
        for j in range(NQ): convert(j, CNT0, 3*(6-j))
        prefix(CNT0)
        a.e(f"s_mul_i32 s{sTR}, s{sTile}, {TS*6}")
        a.e(f"s_mov_b32 s46, s{sTR}")
        set_tile(NTILE//2)
        scatter(CNT0, True)
        a.e(f"s_mov_b32 s{sTR}, s46")
        C1 = CNT0 if S8 else CNT1
        if S8:
            a.e(f"v_lshlrev_b32 v{T0+6}, 3, v0\nv_mov_b32 v{T0+4}, 0\nv_mov_b32 v{T0+5}, 0\nds_write_b64 v{T0+6}, v[{T0+4}:{T0+5}]")
        copyout()
        if S8: a.e("s_waitcnt lgkmcnt(0)\ns_barrier")
        for j in range(NQ): convert(j, C1, 3*(6-j) + NPI)
        prefix(C1)
        scatter(C1, False)
        a.e(f"s_mul_i32 s{sTR}, s{sTile}, {TS*6}")
        copyout()
    if opt.get("rt2"):
        a.e("s_waitcnt vmcnt(0) lgkmcnt(0)\ns_memrealtime s[56:57]\ns_load_dwordx2 s[58:59], s[0:1], 104\ns_waitcnt lgkmcnt(0)")
        a.e(f"s_add_u32 s58, s58, {121<<20}\ns_addc_u32 s59, s59, 0\ns_lshl_b32 s60, s2, 8\ns_lshl_b32 s61, s{sWave}, 4\ns_add_u32 s60, s60, s61")
        a.e("v_mov_b32 v12, s60\nv_mov_b32 v16, s54\nv_mov_b32 v17, s55\nv_mov_b32 v18, s56\nv_mov_b32 v19, s57\nglobal_store_dwordx4 v12, v[16:19], s[58:59]")
    a.e("P1_END:\ns_endpgm")

def kd(name, vgpr, sgpr, accum):
    return f""".amdhsa_kernel {name}
  .amdhsa_next_free_vgpr {vgpr}
  .amdhsa_next_free_sgpr {sgpr}
  .amdhsa_accum_offset {accum}
  .amdhsa_group_segment_fixed_size 0
  .amdhsa_kernarg_size 112
  .amdhsa_user_sgpr_count 2
  .amdhsa_user_sgpr_kernarg_segment_ptr 1
  .amdhsa_system_sgpr_workgroup_id_x 1
  .amdhsa_float_denorm_mode_32 3
  .amdhsa_float_denorm_mode_16_64 3
.end_amdhsa_kernel
"""
```

```python
from common import *

CNT0, CNT1, WSUM, ABASE = 0, 4096, 8192, 8448
BBASE = ABASE + TS*4
P1_LDS = BBASE + TS*2
NQ = 7
LASTQ = TS//4 - 6*1024
NPI = 13
LASTP = TS//2 - 12*1024

def gen_p1(a, name, opt):
    S8 = opt.get('S', 8) == 8
    NBIN = 2048 if S8 else 1024
    MS = 85899 if S8 else M_S
    if opt.get('nsl'): MS = (opt['nsl'] << 32)//400000
    QB = 24
    O = lambda j: QB + 10*j
    I = lambda j: QB + 10*j + 4
    G = lambda j: QB + 10*j + 8
    RK = lambda j: 94 + 4*j
    T0 = 12
    S_IN, S_OUT, S_ANG, S_REC, S_OFF = 8, 12, 16, 20, 24
    sM1, sM2, sNeg, sB, sTile, sTI, sTA, sTR, sWave = 32, 33, 34, 35, 36, 37, 38, 39, 40
    sT0, sT1, sT2 = 41, 42, 43
    ntflag = " nt" if opt.get("p1_nt") else ""
    a.e(f".p2align 8\n.type {name},@function\n{name}:")
    a.e(f"s_cmp_ge_u32 s2, {NTILE//2}\ns_cbranch_scc1 P1_END")
    if opt.get("rt2"): a.e("s_memrealtime s[54:55]")
    a.e("s_load_dwordx4 s[4:7], s[0:1], 8")
    a.e("s_load_dwordx2 s[28:29], s[0:1], 32")
    a.e("s_load_dwordx2 s[30:31], s[0:1], 104")
    if opt.get("p1_wm"):
        a.e("s_load_dwordx2 s[44:45], s[0:1], 0")
        if opt.get("p1_wm", 0) >= 2:
            a.e("s_load_dwordx2 s[62:63], s[0:1], 24\ns_load_dwordx2 s[72:73], s[0:1], 40\ns_load_dwordx4 s[64:67], s[0:1], 56\ns_load_dwordx4 s[68:71], s[0:1], 72")
    a.e("v_lshlrev_b32 v1, 4, v0\nv_lshlrev_b32 v2, 3, v0")
    a.e("v_bfrev_b32 v11, 1")
    a.e(f"v_cmp_gt_u32 vcc, {LASTQ}, v0")
    a.e(f"s_mov_b32 s{sM1}, {M_B}\ns_mov_b32 s{sM2}, {MS}\ns_mov_b32 s{sNeg}, {-BS}\ns_mov_b32 s{sB}, {BBASE}")
    a.e("v_cndmask_b32 v3, v11, v1, vcc\nv_cndmask_b32 v4, v11, v2, vcc")
    a.e("v_mov_b32 v5, 1\nv_lshlrev_b32 v6, 2, v0\nv_mul_u32_u24 v7, 12, v0")
    a.e(f"v_cmp_gt_u32 vcc, {LASTP}, v0\nv_lshlrev_b32 v9, {11 if S8 else 10}, v0\ns_nop 0\nv_cndmask_b32 v8, v11, v7, vcc")
    a.e(f"v_cmp_eq_u32 vcc, 1023, v0\nv_mov_b32 v12, {NBIN*1024}\ns_nop 0\nv_cndmask_b32 v10, v11, v12, vcc")
    a.e(f"v_lshrrev_b32 v12, 6, v0\ns_nop 0\nv_readfirstlane_b32 s{sWave}, v12")
    a.e("v_mov_b32 v13, 0\nds_write_b32 v6, v13 offset:%d\nds_write_b32 v6, v13 offset:%d" % (CNT0, CNT1))
    a.e("s_waitcnt lgkmcnt(0)")
    srd(a, S_IN, 4, T*4); srd(a, S_OUT, 6, T*4); srd(a, S_ANG, 28, T*2); srd(a, S_REC, 30, NTILE*TS*6)
    a.e(f"s_add_u32 s30, s30, {OFFS_OFF}\ns_addc_u32 s31, s31, 0")
    srd(a, S_OFF, 30, (NBIN+1)*512*2)
    if opt.get("p1_wm"):
        srd(a, 48, 44, E*32)
        a.e("s_mul_i32 s46, s2, 391\nv_add_u32 v12, s46, v0\nv_lshlrev_b32 v12, 7, v12")
        a.e("v_cmp_gt_u32 vcc, 391, v0\ns_and_saveexec_b64 s[44:45], vcc\nbuffer_load_dword v13, v12, s[48:51], 0 offen\ns_mov_b64 exec, s[44:45]")
        if opt.get("p1_wm", 0) >= 2:
            lw = a.label("P1WD")
            a.e(f"s_cmp_lg_u32 s{sWave}, 15\ns_cbranch_scc1 {lw}")
            srd(a, 48, 62, E*2)
            a.e("s_mul_i32 s46, s2, 25\nv_and_b32 v12, 63, v0\nv_add_u32 v12, s46, v12\nv_lshlrev_b32 v12, 7, v12")
            a.e("s_mov_b64 exec, 0x1ffffff\nbuffer_load_dword v13, v12, s[48:51], 0 offen\ns_mov_b64 exec, -1")
            a.e(f"{lw}:")
            lw = a.label("P1WW")
            a.e(f"s_cmp_lg_u32 s{sWave}, 14\ns_cbranch_scc1 {lw}\ns_cmp_ge_u32 s2, 8\ns_cbranch_scc1 {lw}")
            a.e("v_and_b32 v12, 63, v0\nv_lshlrev_b32 v12, 7, v12")
            for base, nb in ((72, 16), (64, 256), (66, 768), (68, 512), (70, 512)):
                srd(a, 48, base, nb)
                a.e("buffer_load_dword v13, v12, s[48:51], 0 offen")
            a.e(f"{lw}:")
    a.e("s_barrier")

    def set_tile(expr_add):
        a.e(f"s_add_u32 s{sTile}, s2, {expr_add}")
        a.e(f"s_mul_i32 s{sTI}, s{sTile}, {TS*4}\ns_mul_i32 s{sTA}, s{sTile}, {TS*2}")
    V2 = opt.get("p1v", 1) == 2
    sNI, sNA = 47, 52
    def issue_quad(j):
        vo = "v1" if j < 6 else "v3"; va = "v2" if j < 6 else "v4"
        a.e(f"s_add_u32 s{sT0}, s{sTI}, {j*16384}\ns_add_u32 s{sT1}, s{sTA}, {j*8192}")
        a.e(f"buffer_load_dwordx4 {vr(O(j),4)}, {vo}, s[{S_OUT}:{S_OUT+3}], s{sT0} offen{ntflag}")
        a.e(f"buffer_load_dwordx4 {vr(I(j),4)}, {vo}, s[{S_IN}:{S_IN+3}], s{sT0} offen{ntflag}")
        a.e(f"buffer_load_dwordx2 {vr(G(j),2)}, {va}, s[{S_ANG}:{S_ANG+3}], s{sT1} offen{ntflag}")
    def issue_O(j):
        vo = "v1" if j < 6 else "v3"
        a.e(f"s_add_u32 s{sT0}, s{sNI}, {j*16384}")
        a.e(f"buffer_load_dwordx4 {vr(O(j),4)}, {vo}, s[{S_OUT}:{S_OUT+3}], s{sT0} offen{ntflag}")
    def issue_IG(j):
        vo = "v1" if j < 6 else "v3"; va = "v2" if j < 6 else "v4"
        a.e(f"s_add_u32 s{sT0}, s{sNI}, {j*16384}\ns_add_u32 s{sT1}, s{sNA}, {j*8192}")
        a.e(f"buffer_load_dwordx4 {vr(I(j),4)}, {vo}, s[{S_IN}:{S_IN+3}], s{sT0} offen{ntflag}")
        a.e(f"buffer_load_dwordx2 {vr(G(j),2)}, {va}, s[{S_ANG}:{S_ANG+3}], s{sT1} offen{ntflag}")
    def finalize(j, nxt):
        for k in range(4):
            a.e(f"v_lshl_or_b32 v{RK(j)+k}, v{O(j)+k}, 16, v{RK(j)+k}")
        if nxt: issue_O(j)

    def guard_last(begin):
        if begin:
            lab = a.label("P1_SKIPQ"); guard_last.lab = lab
            a.e(f"v_cmp_gt_u32 vcc, {LASTQ}, v0\ns_and_saveexec_b64 s[44:45], vcc\ns_cbranch_execz {lab}")
        else:
            a.e(f"{guard_last.lab}:\ns_mov_b64 exec, s[44:45]")

    def convert(j, cnt, younger, nxt=False):
        a.e(f"s_waitcnt vmcnt({younger})")
        if V2 and j >= 1:
            a.e("s_waitcnt lgkmcnt(0)")
            finalize(j-1, nxt)
        if j == 6: guard_last(True)
        t = T0
        for k in range(4):
            o, i = O(j)+k, I(j)+k
            a.e(f"v_mul_hi_u32_u24 v{t}, s{sM1}, v{o}")
            a.e(f"v_mul_hi_u32_u24 v{t+1}, s{sM2}, v{i}")
            a.e(f"v_mad_i32_i24 v{t+2}, v{t}, s{sNeg}, v{o}")
            a.e(f"v_lshl_add_u32 v{t+1}, v{t+1}, 8, v{t}")
            a.e(f"v_and_b32 v{t+3}, 15, v{t+2}")
            a.e(f"v_lshlrev_b32 v{o}, 2, v{t+1}")
            a.e(f"v_lshl_or_b32 v{t+3}, v{i}, 5, v{t+3}")
            a.e(f"v_lshrrev_b32 v{t+2}, 4, v{t+2}")
            a.e(f"ds_add_rtn_u32 v{RK(j)+k}, v{o}, v5 offset:{cnt}")
            a.e(f"v_lshl_or_b32 v{i}, v{t+2}, 24, v{t+3}")
        if j == 6: guard_last(False)

    def prefix(cnt, first=True):
        x, cc, y, w, c1 = T0, T0+1, T0+2, T0+3, T0+5
        p0, p1_ = T0+4, T0+5
        a.e("s_waitcnt lgkmcnt(0)")
        if V2: finalize(6, first)
        a.e("s_barrier")
        if S8:
            a.e(f"v_lshlrev_b32 v{T0+6}, 3, v0\nds_read_b64 v[{p0}:{p1_}], v{T0+6}")
        else:
            a.e(f"ds_read_b32 v{cc}, v6 offset:{cnt}")
        a.e(f"v_lshrrev_b32 v{w}, 4, v0\nv_and_b32 v{w}, 0xfc, v{w}")
        if S8:
            a.e(f"s_waitcnt lgkmcnt(0)\nv_add_u32 v{cc}, v{p0}, v{p1_}\nv_mov_b32 v{x}, v{cc}")
        else:
            a.e(f"s_waitcnt lgkmcnt(0)\nv_mov_b32 v{x}, v{cc}")
        for sh in (1, 2, 4, 8):
            a.e(f"s_nop 1\nv_add_u32_dpp v{x}, v{x}, v{x} row_shr:{sh} row_mask:0xf bank_mask:0xf")
        a.e(f"s_nop 1\nv_add_u32_dpp v{x}, v{x}, v{x} row_bcast:15 row_mask:0xa bank_mask:0xf")
        a.e(f"s_nop 1\nv_add_u32_dpp v{x}, v{x}, v{x} row_bcast:31 row_mask:0xc bank_mask:0xf")
        a.e(f"s_mov_b32 exec_lo, 0\ns_brev_b32 exec_hi, 1")
        a.e(f"ds_write_b32 v{w}, v{x} offset:{WSUM}")
        a.e("s_mov_b64 exec, -1")
        a.e("s_waitcnt lgkmcnt(0)\ns_barrier")
        a.e(f"v_and_b32 v{y}, 15, v0\nv_lshlrev_b32 v{y}, 2, v{y}\nds_read_b32 v{y}, v{y} offset:{WSUM}")
        a.e(f"s_waitcnt lgkmcnt(0)\nv_mov_b32 v{w}, v{y}")
        for sh in (1, 2, 4, 8):
            a.e(f"s_nop 1\nv_add_u32_dpp v{w}, v{w}, v{w} row_shr:{sh} row_mask:0xf bank_mask:0xf")
        a.e(f"v_sub_u32 v{w}, v{w}, v{y}\ns_nop 0\nv_readlane_b32 s{sT2}, v{w}, s{sWave}")
        a.e(f"v_sub_u32 v{y}, v{x}, v{cc}\ns_nop 1\nv_add_u32 v{y}, s{sT2}, v{y}")
        a.e(f"v_add_u32 v{x}, s{sT2}, v{x}")
        a.e(f"s_lshl_b32 s{sT0}, s{sTile}, 1")
        if S8:
            a.e(f"v_add_u32 v{p1_}, v{y}, v{p0}\nv_mov_b32 v{p0}, v{y}")
            a.e(f"ds_write_b64 v{T0+6}, v[{p0}:{p1_}]")
            v9 = "v11" if opt.get("p1_nooff") else "v9"
            if V2:
                if first:
                    a.e(f"v_mov_b32 v122, v{p0}\nv_mov_b32 v123, v{p1_}\nv_mov_b32 v124, v{x}")
                else:
                    a.e(f"s_lshl_b32 s53, s2, 2")
                    a.e(f"v_lshl_or_b32 v122, v{p0}, 16, v122\nv_lshl_or_b32 v123, v{p1_}, 16, v123\nv_lshl_or_b32 v124, v{x}, 16, v124")
                    if not opt.get("p1_late", 1):
                        a.e(f"buffer_store_dword v122, {v9}, s[{S_OFF}:{S_OFF+3}], s53 offen")
                        a.e(f"buffer_store_dword v123, {v9}, s[{S_OFF}:{S_OFF+3}], s53 offen offset:1024")
                        a.e(f"buffer_store_dword v124, v10, s[{S_OFF}:{S_OFF+3}], s53 offen")
            else:
                a.e(f"buffer_store_short v{p0}, {v9}, s[{S_OFF}:{S_OFF+3}], s{sT0} offen")
                a.e(f"buffer_store_short v{p1_}, {v9}, s[{S_OFF}:{S_OFF+3}], s{sT0} offen offset:1024")
        else:
            a.e(f"ds_write_b32 v6, v{y} offset:{cnt}")
            a.e(f"buffer_store_short v{y}, v9, s[{S_OFF}:{S_OFF+3}], s{sT0} offen")
        if not V2: a.e(f"buffer_store_short v{x}, v10, s[{S_OFF}:{S_OFF+3}], s{sT0} offen")
        a.e("s_waitcnt lgkmcnt(0)\ns_barrier")

    def scatter(cnt, next_loads):
        st = lambda j: T0 + 4*(j & 1)
        tmp = T0 + 8
        def reads(j):
            if j == 6: guard_last(True)
            for k in range(4):
                if V2:
                    a.e(f"v_lshrrev_b32 v{st(j)+k}, 16, v{RK(j)+k}")
            for k in range(4):
                if V2: a.e(f"ds_read_b32 v{st(j)+k}, v{st(j)+k} offset:{cnt}")
                else: a.e(f"ds_read_b32 v{st(j)+k}, v{O(j)+k} offset:{cnt}")
            if j == 6: guard_last(False)
        reads(0)
        for j in range(NQ):
            if j+1 < NQ:
                reads(j+1)
                a.e("s_waitcnt lgkmcnt(4)" if j+1 < 6 else "s_waitcnt lgkmcnt(0)")
            else:
                a.e("s_waitcnt lgkmcnt(0)")
            if j == 6: guard_last(True)
            for k in range(4):
                p = st(j)+k
                if V2: a.e(f"v_add_u32_sdwa v{p}, v{p}, v{RK(j)+k} dst_sel:DWORD dst_unused:UNUSED_PAD src0_sel:DWORD src1_sel:WORD_0")
                else: a.e(f"v_add_u32 v{p}, v{p}, v{RK(j)+k}")
                a.e(f"v_lshlrev_b32 v{tmp}, 2, v{p}")
                a.e(f"v_lshl_add_u32 v{tmp+1}, v{p}, 1, s{sB}")
                a.e(f"ds_write_b32 v{tmp}, v{I(j)+k} offset:{ABASE}")
                g = G(j) + (k >> 1)
                a.e(f"ds_write_b16{'_d16_hi' if (k & 1) else ''} v{tmp+1}, v{g}")
            if j == 6: guard_last(False)
            if next_loads:
                if V2: issue_IG(j)
                else: issue_quad(j)
            elif V2 and opt.get("p1_late", 1):
                v9 = "v11" if opt.get("p1_nooff") else "v9"
                if j == 0: a.e(f"buffer_store_dword v122, {v9}, s[{S_OFF}:{S_OFF+3}], s53 offen")
                if j == 3: a.e(f"buffer_store_dword v123, {v9}, s[{S_OFF}:{S_OFF+3}], s53 offen offset:1024")
                if j == 5: a.e(f"buffer_store_dword v124, v10, s[{S_OFF}:{S_OFF+3}], s53 offen")
        a.e("s_waitcnt lgkmcnt(0)\ns_barrier")

    def copyout():
        tr = lambda q: 94 + 4*q
        av, bv = T0, T0+1
        a.e(f"v_lshlrev_b32 v{av}, 3, v0\nv_add_u32 v{av}, {ABASE}, v{av}")
        a.e(f"v_add_u32 v{bv}, s{sB}, v6")
        it = 0
        while it < NPI:
            n = min(7, NPI-it)
            for q in range(n):
                i2 = it+q
                if i2*8192 > 65535-8:
                    a.e(f"v_add_u32 v{T0+2}, {i2*8192}, v{av}")
                    a.e(f"ds_read_b64 {vr(tr(q),2)}, v{T0+2}")
                else:
                    a.e(f"ds_read_b64 {vr(tr(q),2)}, v{av} offset:{i2*8192}")
                a.e(f"ds_read_b32 v{tr(q)+2}, v{bv} offset:{i2*4096}")
            for q in range(n):
                i2 = it+q
                a.e(f"s_waitcnt lgkmcnt({2*(n-1-q)})")
                a.e(f"s_add_u32 s{sT0}, s{sTR}, {i2*12288}")
                vo = "v7" if i2 < NPI-1 else "v8"
                if opt.get("p1_nost"): vo = "v11"
                a.e(f"buffer_store_dwordx3 {vr(tr(q),3)}, {vo}, s[{S_REC}:{S_REC+3}], s{sT0} offen" + ["", " nt", " sc1", " sc0 sc1", " sc0", " sc1 nt"][opt.get("p1_st", 0)])
            it += n
            if it < NPI:
                a.e("s_nop 1")
    if V2:
        PR = opt.get("p1prof")
        nst = [0]
        def stamp():
            if not PR: return
            k = nst[0]; nst[0] += 1
            a.e(f"s_memtime s[{60+2*k}:{61+2*k}]")
        stamp()
        a.e(f"s_lshl_b32 s{sTile}, s2, 1")
        a.e(f"s_mul_i32 s{sTI}, s{sTile}, {TS*4}\ns_mul_i32 s{sTA}, s{sTile}, {TS*2}")
        a.e(f"s_add_u32 s{sNI}, s{sTI}, {TS*4}\ns_add_u32 s{sNA}, s{sTA}, {TS*2}")
        for j in range(NQ): issue_quad(j)
        stamp()
        for j in range(NQ):
            convert(j, CNT0, 3*(6-j) + max(j-1, 0), True)
            if j == 0: stamp()
        stamp()
        prefix(CNT0, True)
        stamp()
        a.e(f"s_mul_i32 s{sTR}, s{sTile}, {TS*6}")
        scatter(CNT0, True)
        stamp()
        a.e(f"v_lshlrev_b32 v{T0+6}, 3, v0\nv_mov_b32 v{T0+4}, 0\nv_mov_b32 v{T0+5}, 0\nds_write_b64 v{T0+6}, v[{T0+4}:{T0+5}]")
        copyout()
        a.e("s_waitcnt lgkmcnt(0)\ns_barrier")
        stamp()
        for j in range(NQ):
            convert(j, CNT0, 2*(6-j) + NPI, False)
            if j == 0: stamp()
        stamp()
        prefix(CNT0, False)
        stamp()
        scatter(CNT0, False)
        stamp()
        a.e(f"s_add_u32 s{sTR}, s{sTR}, {TS*6}")
        copyout()
        stamp()
        if PR:
            a.e("s_waitcnt vmcnt(0)")
            stamp()
            a.e("s_waitcnt lgkmcnt(0)")
            sk = a.label("P1PR")
            a.e(f"s_and_b32 s58, s2, 63\ns_cmp_lg_u32 s58, 0\ns_cbranch_scc1 {sk}\ns_cmp_lg_u32 s{sWave}, 0\ns_cbranch_scc1 {sk}")
            a.e("s_load_dwordx2 s[58:59], s[0:1], 96\ns_waitcnt lgkmcnt(0)")
            a.e("s_lshr_b32 s57, s2, 6\ns_lshl_b32 s57, s57, 6\nv_mov_b32 v12, s57")
            for k in range(nst[0]):
                a.e(f"s_sub_u32 s56, s{60+2*k}, s60\nv_mov_b32 v13, s56\nglobal_store_dword v12, v13, s[58:59] offset:{4*k}")
            a.e(f"{sk}:")
    else:
        set_tile(0)
        for j in range(NQ): issue_quad(j)
        for j in range(NQ): convert(j, CNT0, 3*(6-j))
        prefix(CNT0)
        a.e(f"s_mul_i32 s{sTR}, s{sTile}, {TS*6}")
        a.e(f"s_mov_b32 s46, s{sTR}")
        set_tile(NTILE//2)
        scatter(CNT0, True)
        a.e(f"s_mov_b32 s{sTR}, s46")
        C1 = CNT0 if S8 else CNT1
        if S8:
            a.e(f"v_lshlrev_b32 v{T0+6}, 3, v0\nv_mov_b32 v{T0+4}, 0\nv_mov_b32 v{T0+5}, 0\nds_write_b64 v{T0+6}, v[{T0+4}:{T0+5}]")
        copyout()
        if S8: a.e("s_waitcnt lgkmcnt(0)\ns_barrier")
        for j in range(NQ): convert(j, C1, 3*(6-j) + NPI)
        prefix(C1)
        scatter(C1, False)
        a.e(f"s_mul_i32 s{sTR}, s{sTile}, {TS*6}")
        copyout()
    if opt.get("rt2"):
        a.e("s_waitcnt vmcnt(0) lgkmcnt(0)\ns_memrealtime s[56:57]\ns_load_dwordx2 s[58:59], s[0:1], 104\ns_waitcnt lgkmcnt(0)")
        a.e(f"s_add_u32 s58, s58, {121<<20}\ns_addc_u32 s59, s59, 0\ns_lshl_b32 s60, s2, 8\ns_lshl_b32 s61, s{sWave}, 4\ns_add_u32 s60, s60, s61")
        a.e("v_mov_b32 v12, s60\nv_mov_b32 v16, s54\nv_mov_b32 v17, s55\nv_mov_b32 v18, s56\nv_mov_b32 v19, s57\nglobal_store_dwordx4 v12, v[16:19], s[58:59]")
    a.e("P1_END:\ns_endpgm")

def kd(name, vgpr, sgpr, accum):
    return f""".amdhsa_kernel {name}
  .amdhsa_next_free_vgpr {vgpr}
  .amdhsa_next_free_sgpr {sgpr}
  .amdhsa_accum_offset {accum}
  .amdhsa_group_segment_fixed_size 0
  .amdhsa_kernarg_size 112
  .amdhsa_user_sgpr_count 2
  .amdhsa_user_sgpr_kernarg_segment_ptr 1
  .amdhsa_system_sgpr_workgroup_id_x 1
  .amdhsa_float_denorm_mode_32 3
  .amdhsa_float_denorm_mode_16_64 3
.end_amdhsa_kernel
"""
```

```python
from common import *

CNT0, CNT1, WSUM, ABASE = 0, 4096, 8192, 8448
BBASE = ABASE + TS*4
P1_LDS = BBASE + TS*2
NQ = 7
LASTQ = TS//4 - 6*1024
NPI = 13
LASTP = TS//2 - 12*1024

def gen_p1(a, name, opt):
    S8 = opt.get('S', 8) == 8
    NBIN = 2048 if S8 else 1024
    MS = 85899 if S8 else M_S
    if opt.get('nsl'): MS = (opt['nsl'] << 32)//400000
    QB = 24
    O = lambda j: QB + 10*j
    I = lambda j: QB + 10*j + 4
    G = lambda j: QB + 10*j + 8
    RK = lambda j: 94 + 4*j
    T0 = 12
    S_IN, S_OUT, S_ANG, S_REC, S_OFF = 8, 12, 16, 20, 24
    sM1, sM2, sNeg, sB, sTile, sTI, sTA, sTR, sWave = 32, 33, 34, 35, 36, 37, 38, 39, 40
    sT0, sT1, sT2 = 41, 42, 43
    ntflag = " nt" if opt.get("p1_nt") else ""
    a.e(f".p2align 8\n.type {name},@function\n{name}:")
    a.e(f"s_cmp_ge_u32 s2, {NTILE//2}\ns_cbranch_scc1 P1_END")
    if opt.get("rt2"): a.e("s_memrealtime s[54:55]")
    a.e("s_load_dwordx4 s[4:7], s[0:1], 8")
    a.e("s_load_dwordx2 s[28:29], s[0:1], 32")
    a.e("s_load_dwordx2 s[30:31], s[0:1], 104")
    if opt.get("p1_wm"):
        a.e("s_load_dwordx2 s[44:45], s[0:1], 0")
        if opt.get("p1_wm", 0) >= 2:
            a.e("s_load_dwordx2 s[62:63], s[0:1], 24\ns_load_dwordx2 s[72:73], s[0:1], 40\ns_load_dwordx4 s[64:67], s[0:1], 56\ns_load_dwordx4 s[68:71], s[0:1], 72")
    a.e("v_lshlrev_b32 v1, 4, v0\nv_lshlrev_b32 v2, 3, v0")
    a.e("v_bfrev_b32 v11, 1")
    a.e(f"v_cmp_gt_u32 vcc, {LASTQ}, v0")
    a.e(f"s_mov_b32 s{sM1}, {M_B}\ns_mov_b32 s{sM2}, {MS}\ns_mov_b32 s{sNeg}, {-BS}\ns_mov_b32 s{sB}, {BBASE}")
    a.e("v_cndmask_b32 v3, v11, v1, vcc\nv_cndmask_b32 v4, v11, v2, vcc")
    a.e("v_mov_b32 v5, 1\nv_lshlrev_b32 v6, 2, v0\nv_mul_u32_u24 v7, 12, v0")
    a.e(f"v_cmp_gt_u32 vcc, {LASTP}, v0\nv_lshlrev_b32 v9, {11 if S8 else 10}, v0\ns_nop 0\nv_cndmask_b32 v8, v11, v7, vcc")
    a.e(f"v_cmp_eq_u32 vcc, 1023, v0\nv_mov_b32 v12, {NBIN*1024}\ns_nop 0\nv_cndmask_b32 v10, v11, v12, vcc")
    a.e(f"v_lshrrev_b32 v12, 6, v0\ns_nop 0\nv_readfirstlane_b32 s{sWave}, v12")
    a.e("v_mov_b32 v13, 0\nds_write_b32 v6, v13 offset:%d\nds_write_b32 v6, v13 offset:%d" % (CNT0, CNT1))
    a.e("s_waitcnt lgkmcnt(0)")
    srd(a, S_IN, 4, T*4); srd(a, S_OUT, 6, T*4); srd(a, S_ANG, 28, T*2); srd(a, S_REC, 30, NTILE*TS*6)
    a.e(f"s_add_u32 s30, s30, {OFFS_OFF}\ns_addc_u32 s31, s31, 0")
    srd(a, S_OFF, 30, (NBIN+1)*512*2)
    if opt.get("p1_wm"):
        srd(a, 48, 44, E*32)
        a.e("s_mul_i32 s46, s2, 391\nv_add_u32 v12, s46, v0\nv_lshlrev_b32 v12, 7, v12")
        a.e("v_cmp_gt_u32 vcc, 391, v0\ns_and_saveexec_b64 s[44:45], vcc\nbuffer_load_dword v13, v12, s[48:51], 0 offen\ns_mov_b64 exec, s[44:45]")
        if opt.get("p1_wm", 0) >= 2:
            lw = a.label("P1WD")
            a.e(f"s_cmp_lg_u32 s{sWave}, 15\ns_cbranch_scc1 {lw}")
            srd(a, 48, 62, E*2)
            a.e("s_mul_i32 s46, s2, 25\nv_and_b32 v12, 63, v0\nv_add_u32 v12, s46, v12\nv_lshlrev_b32 v12, 7, v12")
            a.e("s_mov_b64 exec, 0x1ffffff\nbuffer_load_dword v13, v12, s[48:51], 0 offen\ns_mov_b64 exec, -1")
            a.e(f"{lw}:")
            lw = a.label("P1WW")
            a.e(f"s_cmp_lg_u32 s{sWave}, 14\ns_cbranch_scc1 {lw}\ns_cmp_ge_u32 s2, 8\ns_cbranch_scc1 {lw}")
            a.e("v_and_b32 v12, 63, v0\nv_lshlrev_b32 v12, 7, v12")
            for base, nb in ((72, 16), (64, 256), (66, 768), (68, 512), (70, 512)):
                srd(a, 48, base, nb)
                a.e("buffer_load_dword v13, v12, s[48:51], 0 offen")
            a.e(f"{lw}:")
    a.e("s_barrier")

    def set_tile(expr_add):
        a.e(f"s_add_u32 s{sTile}, s2, {expr_add}")
        a.e(f"s_mul_i32 s{sTI}, s{sTile}, {TS*4}\ns_mul_i32 s{sTA}, s{sTile}, {TS*2}")
    V2 = opt.get("p1v", 1) == 2
    sNI, sNA = 47, 52
    def issue_quad(j):
        vo = "v1" if j < 6 else "v3"; va = "v2" if j < 6 else "v4"
        a.e(f"s_add_u32 s{sT0}, s{sTI}, {j*16384}\ns_add_u32 s{sT1}, s{sTA}, {j*8192}")
        a.e(f"buffer_load_dwordx4 {vr(O(j),4)}, {vo}, s[{S_OUT}:{S_OUT+3}], s{sT0} offen{ntflag}")
        a.e(f"buffer_load_dwordx4 {vr(I(j),4)}, {vo}, s[{S_IN}:{S_IN+3}], s{sT0} offen{ntflag}")
        a.e(f"buffer_load_dwordx2 {vr(G(j),2)}, {va}, s[{S_ANG}:{S_ANG+3}], s{sT1} offen{ntflag}")
    def issue_O(j):
        vo = "v1" if j < 6 else "v3"
        a.e(f"s_add_u32 s{sT0}, s{sNI}, {j*16384}")
        a.e(f"buffer_load_dwordx4 {vr(O(j),4)}, {vo}, s[{S_OUT}:{S_OUT+3}], s{sT0} offen{ntflag}")
    def issue_IG(j):
        vo = "v1" if j < 6 else "v3"; va = "v2" if j < 6 else "v4"
        a.e(f"s_add_u32 s{sT0}, s{sNI}, {j*16384}\ns_add_u32 s{sT1}, s{sNA}, {j*8192}")
        a.e(f"buffer_load_dwordx4 {vr(I(j),4)}, {vo}, s[{S_IN}:{S_IN+3}], s{sT0} offen{ntflag}")
        a.e(f"buffer_load_dwordx2 {vr(G(j),2)}, {va}, s[{S_ANG}:{S_ANG+3}], s{sT1} offen{ntflag}")
    def finalize(j, nxt):
        for k in range(4):
            a.e(f"v_lshl_or_b32 v{RK(j)+k}, v{O(j)+k}, 16, v{RK(j)+k}")
        if nxt: issue_O(j)

    def guard_last(begin):
        if begin:
            lab = a.label("P1_SKIPQ"); guard_last.lab = lab
            a.e(f"v_cmp_gt_u32 vcc, {LASTQ}, v0\ns_and_saveexec_b64 s[44:45], vcc\ns_cbranch_execz {lab}")
        else:
            a.e(f"{guard_last.lab}:\ns_mov_b64 exec, s[44:45]")

    def convert(j, cnt, younger, nxt=False):
        a.e(f"s_waitcnt vmcnt({younger})")
        if V2 and j >= 1:
            a.e("s_waitcnt lgkmcnt(0)")
            finalize(j-1, nxt)
        if j == 6: guard_last(True)
        t = T0
        for k in range(4):
            o, i = O(j)+k, I(j)+k
            a.e(f"v_mul_hi_u32_u24 v{t}, s{sM1}, v{o}")
            a.e(f"v_mul_hi_u32_u24 v{t+1}, s{sM2}, v{i}")
            a.e(f"v_mad_i32_i24 v{t+2}, v{t}, s{sNeg}, v{o}")
            a.e(f"v_lshl_add_u32 v{t+1}, v{t+1}, 8, v{t}")
            a.e(f"v_and_b32 v{t+3}, 15, v{t+2}")
            a.e(f"v_lshlrev_b32 v{o}, 2, v{t+1}")
            a.e(f"v_lshl_or_b32 v{t+3}, v{i}, 5, v{t+3}")
            a.e(f"v_lshrrev_b32 v{t+2}, 4, v{t+2}")
            a.e(f"ds_add_rtn_u32 v{RK(j)+k}, v{o}, v5 offset:{cnt}")
            a.e(f"v_lshl_or_b32 v{i}, v{t+2}, 24, v{t+3}")
        if j == 6: guard_last(False)

    def prefix(cnt, first=True):
        x, cc, y, w, c1 = T0, T0+1, T0+2, T0+3, T0+5
        p0, p1_ = T0+4, T0+5
        a.e("s_waitcnt lgkmcnt(0)")
        if V2: finalize(6, first)
        a.e("s_barrier")
        if S8:
            a.e(f"v_lshlrev_b32 v{T0+6}, 3, v0\nds_read_b64 v[{p0}:{p1_}], v{T0+6}")
        else:
            a.e(f"ds_read_b32 v{cc}, v6 offset:{cnt}")
        a.e(f"v_lshrrev_b32 v{w}, 4, v0\nv_and_b32 v{w}, 0xfc, v{w}")
        if S8:
            a.e(f"s_waitcnt lgkmcnt(0)\nv_add_u32 v{cc}, v{p0}, v{p1_}\nv_mov_b32 v{x}, v{cc}")
        else:
            a.e(f"s_waitcnt lgkmcnt(0)\nv_mov_b32 v{x}, v{cc}")
        for sh in (1, 2, 4, 8):
            a.e(f"s_nop 1\nv_add_u32_dpp v{x}, v{x}, v{x} row_shr:{sh} row_mask:0xf bank_mask:0xf")
        a.e(f"s_nop 1\nv_add_u32_dpp v{x}, v{x}, v{x} row_bcast:15 row_mask:0xa bank_mask:0xf")
        a.e(f"s_nop 1\nv_add_u32_dpp v{x}, v{x}, v{x} row_bcast:31 row_mask:0xc bank_mask:0xf")
        a.e(f"s_mov_b32 exec_lo, 0\ns_brev_b32 exec_hi, 1")
        a.e(f"ds_write_b32 v{w}, v{x} offset:{WSUM}")
        a.e("s_mov_b64 exec, -1")
        a.e("s_waitcnt lgkmcnt(0)\ns_barrier")
        a.e(f"v_and_b32 v{y}, 15, v0\nv_lshlrev_b32 v{y}, 2, v{y}\nds_read_b32 v{y}, v{y} offset:{WSUM}")
        a.e(f"s_waitcnt lgkmcnt(0)\nv_mov_b32 v{w}, v{y}")
        for sh in (1, 2, 4, 8):
            a.e(f"s_nop 1\nv_add_u32_dpp v{w}, v{w}, v{w} row_shr:{sh} row_mask:0xf bank_mask:0xf")
        a.e(f"v_sub_u32 v{w}, v{w}, v{y}\ns_nop 0\nv_readlane_b32 s{sT2}, v{w}, s{sWave}")
        a.e(f"v_sub_u32 v{y}, v{x}, v{cc}\ns_nop 1\nv_add_u32 v{y}, s{sT2}, v{y}")
        a.e(f"v_add_u32 v{x}, s{sT2}, v{x}")
        a.e(f"s_lshl_b32 s{sT0}, s{sTile}, 1")
        if S8:
            a.e(f"v_add_u32 v{p1_}, v{y}, v{p0}\nv_mov_b32 v{p0}, v{y}")
            a.e(f"ds_write_b64 v{T0+6}, v[{p0}:{p1_}]")
            v9 = "v11" if opt.get("p1_nooff") else "v9"
            if V2:
                if first:
                    a.e(f"v_mov_b32 v122, v{p0}\nv_mov_b32 v123, v{p1_}\nv_mov_b32 v124, v{x}")
                else:
                    a.e(f"s_lshl_b32 s53, s2, 2")
                    a.e(f"v_lshl_or_b32 v122, v{p0}, 16, v122\nv_lshl_or_b32 v123, v{p1_}, 16, v123\nv_lshl_or_b32 v124, v{x}, 16, v124")
                    if not opt.get("p1_late", 1):
                        a.e(f"buffer_store_dword v122, {v9}, s[{S_OFF}:{S_OFF+3}], s53 offen")
                        a.e(f"buffer_store_dword v123, {v9}, s[{S_OFF}:{S_OFF+3}], s53 offen offset:1024")
                        a.e(f"buffer_store_dword v124, v10, s[{S_OFF}:{S_OFF+3}], s53 offen")
            else:
                a.e(f"buffer_store_short v{p0}, {v9}, s[{S_OFF}:{S_OFF+3}], s{sT0} offen")
                a.e(f"buffer_store_short v{p1_}, {v9}, s[{S_OFF}:{S_OFF+3}], s{sT0} offen offset:1024")
        else:
            a.e(f"ds_write_b32 v6, v{y} offset:{cnt}")
            a.e(f"buffer_store_short v{y}, v9, s[{S_OFF}:{S_OFF+3}], s{sT0} offen")
        if not V2: a.e(f"buffer_store_short v{x}, v10, s[{S_OFF}:{S_OFF+3}], s{sT0} offen")
        a.e("s_waitcnt lgkmcnt(0)\ns_barrier")

    def scatter(cnt, next_loads):
        st = lambda j: T0 + 4*(j & 1)
        tmp = T0 + 8
        def reads(j):
            if j == 6: guard_last(True)
            for k in range(4):
                if V2:
                    a.e(f"v_lshrrev_b32 v{st(j)+k}, 16, v{RK(j)+k}")
            for k in range(4):
                if V2: a.e(f"ds_read_b32 v{st(j)+k}, v{st(j)+k} offset:{cnt}")
                else: a.e(f"ds_read_b32 v{st(j)+k}, v{O(j)+k} offset:{cnt}")
            if j == 6: guard_last(False)
        reads(0)
        for j in range(NQ):
            if j+1 < NQ:
                reads(j+1)
                a.e("s_waitcnt lgkmcnt(4)" if j+1 < 6 else "s_waitcnt lgkmcnt(0)")
            else:
                a.e("s_waitcnt lgkmcnt(0)")
            if j == 6: guard_last(True)
            for k in range(4):
                p = st(j)+k
                if V2: a.e(f"v_add_u32_sdwa v{p}, v{p}, v{RK(j)+k} dst_sel:DWORD dst_unused:UNUSED_PAD src0_sel:DWORD src1_sel:WORD_0")
                else: a.e(f"v_add_u32 v{p}, v{p}, v{RK(j)+k}")
                a.e(f"v_lshlrev_b32 v{tmp}, 2, v{p}")
                a.e(f"v_lshl_add_u32 v{tmp+1}, v{p}, 1, s{sB}")
                a.e(f"ds_write_b32 v{tmp}, v{I(j)+k} offset:{ABASE}")
                g = G(j) + (k >> 1)
                a.e(f"ds_write_b16{'_d16_hi' if (k & 1) else ''} v{tmp+1}, v{g}")
            if j == 6: guard_last(False)
            if next_loads:
                if V2: issue_IG(j)
                else: issue_quad(j)
            elif V2 and opt.get("p1_late", 1):
                v9 = "v11" if opt.get("p1_nooff") else "v9"
                if j == 0: a.e(f"buffer_store_dword v122, {v9}, s[{S_OFF}:{S_OFF+3}], s53 offen")
                if j == 3: a.e(f"buffer_store_dword v123, {v9}, s[{S_OFF}:{S_OFF+3}], s53 offen offset:1024")
                if j == 5: a.e(f"buffer_store_dword v124, v10, s[{S_OFF}:{S_OFF+3}], s53 offen")
        a.e("s_waitcnt lgkmcnt(0)\ns_barrier")

    def copyout():
        tr = lambda q: 94 + 4*q
        av, bv = T0, T0+1
        a.e(f"v_lshlrev_b32 v{av}, 3, v0\nv_add_u32 v{av}, {ABASE}, v{av}")
        a.e(f"v_add_u32 v{bv}, s{sB}, v6")
        it = 0
        while it < NPI:
            n = min(7, NPI-it)
            for q in range(n):
                i2 = it+q
                if i2*8192 > 65535-8:
                    a.e(f"v_add_u32 v{T0+2}, {i2*8192}, v{av}")
                    a.e(f"ds_read_b64 {vr(tr(q),2)}, v{T0+2}")
                else:
                    a.e(f"ds_read_b64 {vr(tr(q),2)}, v{av} offset:{i2*8192}")
                a.e(f"ds_read_b32 v{tr(q)+2}, v{bv} offset:{i2*4096}")
            for q in range(n):
                i2 = it+q
                a.e(f"s_waitcnt lgkmcnt({2*(n-1-q)})")
                a.e(f"s_add_u32 s{sT0}, s{sTR}, {i2*12288}")
                vo = "v7" if i2 < NPI-1 else "v8"
                if opt.get("p1_nost"): vo = "v11"
                a.e(f"buffer_store_dwordx3 {vr(tr(q),3)}, {vo}, s[{S_REC}:{S_REC+3}], s{sT0} offen" + ["", " nt", " sc1", " sc0 sc1", " sc0", " sc1 nt"][opt.get("p1_st", 0)])
            it += n
            if it < NPI:
                a.e("s_nop 1")
    if V2:
        PR = opt.get("p1prof")
        nst = [0]
        def stamp():
            if not PR: return
            k = nst[0]; nst[0] += 1
            a.e(f"s_memtime s[{60+2*k}:{61+2*k}]")
        stamp()
        a.e(f"s_lshl_b32 s{sTile}, s2, 1")
        a.e(f"s_mul_i32 s{sTI}, s{sTile}, {TS*4}\ns_mul_i32 s{sTA}, s{sTile}, {TS*2}")
        a.e(f"s_add_u32 s{sNI}, s{sTI}, {TS*4}\ns_add_u32 s{sNA}, s{sTA}, {TS*2}")
        for j in range(NQ): issue_quad(j)
        stamp()
        for j in range(NQ):
            convert(j, CNT0, 3*(6-j) + max(j-1, 0), True)
            if j == 0: stamp()
        stamp()
        prefix(CNT0, True)
        stamp()
        a.e(f"s_mul_i32 s{sTR}, s{sTile}, {TS*6}")
        scatter(CNT0, True)
        stamp()
        a.e(f"v_lshlrev_b32 v{T0+6}, 3, v0\nv_mov_b32 v{T0+4}, 0\nv_mov_b32 v{T0+5}, 0\nds_write_b64 v{T0+6}, v[{T0+4}:{T0+5}]")
        if opt.get("p1_eb", 1):
            a.e("s_waitcnt lgkmcnt(0)\ns_barrier")
            copyout()
        else:
            copyout()
            a.e("s_waitcnt lgkmcnt(0)\ns_barrier")
        stamp()
        for j in range(NQ):
            convert(j, CNT0, 2*(6-j) + NPI, False)
            if j == 0: stamp()
        stamp()
        prefix(CNT0, False)
        stamp()
        scatter(CNT0, False)
        stamp()
        a.e(f"s_add_u32 s{sTR}, s{sTR}, {TS*6}")
        copyout()
        stamp()
        if PR:
            a.e("s_waitcnt vmcnt(0)")
            stamp()
            a.e("s_waitcnt lgkmcnt(0)")
            sk = a.label("P1PR")
            a.e(f"s_and_b32 s58, s2, 63\ns_cmp_lg_u32 s58, 0\ns_cbranch_scc1 {sk}\ns_cmp_lg_u32 s{sWave}, 0\ns_cbranch_scc1 {sk}")
            a.e("s_load_dwordx2 s[58:59], s[0:1], 96\ns_waitcnt lgkmcnt(0)")
            a.e("s_lshr_b32 s57, s2, 6\ns_lshl_b32 s57, s57, 6\nv_mov_b32 v12, s57")
            for k in range(nst[0]):
                a.e(f"s_sub_u32 s56, s{60+2*k}, s60\nv_mov_b32 v13, s56\nglobal_store_dword v12, v13, s[58:59] offset:{4*k}")
            a.e(f"{sk}:")
    else:
        set_tile(0)
        for j in range(NQ): issue_quad(j)
        for j in range(NQ): convert(j, CNT0, 3*(6-j))
        prefix(CNT0)
        a.e(f"s_mul_i32 s{sTR}, s{sTile}, {TS*6}")
        a.e(f"s_mov_b32 s46, s{sTR}")
        set_tile(NTILE//2)
        scatter(CNT0, True)
        a.e(f"s_mov_b32 s{sTR}, s46")
        C1 = CNT0 if S8 else CNT1
        if S8:
            a.e(f"v_lshlrev_b32 v{T0+6}, 3, v0\nv_mov_b32 v{T0+4}, 0\nv_mov_b32 v{T0+5}, 0\nds_write_b64 v{T0+6}, v[{T0+4}:{T0+5}]")
        copyout()
        if S8: a.e("s_waitcnt lgkmcnt(0)\ns_barrier")
        for j in range(NQ): convert(j, C1, 3*(6-j) + NPI)
        prefix(C1)
        scatter(C1, False)
        a.e(f"s_mul_i32 s{sTR}, s{sTile}, {TS*6}")
        copyout()
    if opt.get("rt2"):
        a.e("s_waitcnt vmcnt(0) lgkmcnt(0)\ns_memrealtime s[56:57]\ns_load_dwordx2 s[58:59], s[0:1], 104\ns_waitcnt lgkmcnt(0)")
        a.e(f"s_add_u32 s58, s58, {121<<20}\ns_addc_u32 s59, s59, 0\ns_lshl_b32 s60, s2, 8\ns_lshl_b32 s61, s{sWave}, 4\ns_add_u32 s60, s60, s61")
        a.e("v_mov_b32 v12, s60\nv_mov_b32 v16, s54\nv_mov_b32 v17, s55\nv_mov_b32 v18, s56\nv_mov_b32 v19, s57\nglobal_store_dwordx4 v12, v[16:19], s[58:59]")
    a.e("P1_END:\ns_endpgm")

def kd(name, vgpr, sgpr, accum):
    return f""".amdhsa_kernel {name}
  .amdhsa_next_free_vgpr {vgpr}
  .amdhsa_next_free_sgpr {sgpr}
  .amdhsa_accum_offset {accum}
  .amdhsa_group_segment_fixed_size 0
  .amdhsa_kernarg_size 112
  .amdhsa_user_sgpr_count 2
  .amdhsa_user_sgpr_kernarg_segment_ptr 1
  .amdhsa_system_sgpr_workgroup_id_x 1
  .amdhsa_float_denorm_mode_32 3
  .amdhsa_float_denorm_mode_16_64 3
.end_amdhsa_kernel
"""
```

```python
from common import *

CNT0, CNT1, WSUM, ABASE = 0, 4096, 8192, 8448
BBASE = ABASE + TS*4
P1_LDS = BBASE + TS*2
NQ = 7
LASTQ = TS//4 - 6*1024
NPI = 13
LASTP = TS//2 - 12*1024

def gen_p1(a, name, opt):
    S8 = opt.get('S', 8) == 8
    NBIN = 2048 if S8 else 1024
    MS = 85899 if S8 else M_S
    if opt.get('nsl'): MS = (opt['nsl'] << 32)//400000
    QB = 24
    O = lambda j: QB + 10*j
    I = lambda j: QB + 10*j + 4
    G = lambda j: QB + 10*j + 8
    RK = lambda j: 94 + 4*j
    T0 = 12
    S_IN, S_OUT, S_ANG, S_REC, S_OFF = 8, 12, 16, 20, 24
    sM1, sM2, sNeg, sB, sTile, sTI, sTA, sTR, sWave = 32, 33, 34, 35, 36, 37, 38, 39, 40
    sT0, sT1, sT2 = 41, 42, 43
    ntflag = " nt" if opt.get("p1_nt") else ""
    a.e(f".p2align 8\n.type {name},@function\n{name}:")
    a.e(f"s_cmp_ge_u32 s2, {NTILE//2}\ns_cbranch_scc1 P1_END")
    if opt.get("rt2"): a.e("s_memrealtime s[54:55]")
    a.e("s_load_dwordx4 s[4:7], s[0:1], 8")
    a.e("s_load_dwordx2 s[28:29], s[0:1], 32")
    a.e("s_load_dwordx2 s[30:31], s[0:1], 104")
    if opt.get("p1_wm"):
        a.e("s_load_dwordx2 s[74:75], s[0:1], 0")
        if opt.get("p1_wm", 0) >= 2:
            a.e("s_load_dwordx2 s[62:63], s[0:1], 24\ns_load_dwordx2 s[72:73], s[0:1], 40\ns_load_dwordx4 s[64:67], s[0:1], 56\ns_load_dwordx4 s[68:71], s[0:1], 72")
    a.e("v_lshlrev_b32 v1, 4, v0\nv_lshlrev_b32 v2, 3, v0")
    a.e("v_bfrev_b32 v11, 1")
    a.e(f"v_cmp_gt_u32 vcc, {LASTQ}, v0")
    a.e(f"s_mov_b32 s{sM1}, {M_B}\ns_mov_b32 s{sM2}, {MS}\ns_mov_b32 s{sNeg}, {-BS}\ns_mov_b32 s{sB}, {BBASE}")
    a.e("v_cndmask_b32 v3, v11, v1, vcc\nv_cndmask_b32 v4, v11, v2, vcc")
    a.e("v_mov_b32 v5, 1\nv_lshlrev_b32 v6, 2, v0\nv_mul_u32_u24 v7, 12, v0")
    a.e(f"v_cmp_gt_u32 vcc, {LASTP}, v0\nv_lshlrev_b32 v9, {11 if S8 else 10}, v0\ns_nop 0\nv_cndmask_b32 v8, v11, v7, vcc")
    a.e(f"v_cmp_eq_u32 vcc, 1023, v0\nv_mov_b32 v12, {NBIN*1024}\ns_nop 0\nv_cndmask_b32 v10, v11, v12, vcc")
    a.e(f"v_lshrrev_b32 v12, 6, v0\ns_nop 0\nv_readfirstlane_b32 s{sWave}, v12")
    a.e("v_mov_b32 v13, 0\nds_write_b32 v6, v13 offset:%d\nds_write_b32 v6, v13 offset:%d" % (CNT0, CNT1))
    a.e("s_waitcnt lgkmcnt(0)")
    srd(a, S_IN, 4, T*4); srd(a, S_OUT, 6, T*4); srd(a, S_ANG, 28, T*2); srd(a, S_REC, 30, NTILE*TS*6)
    a.e(f"s_add_u32 s30, s30, {OFFS_OFF}\ns_addc_u32 s31, s31, 0")
    srd(a, S_OFF, 30, (NBIN+1)*512*2)
    def warm():
        srd(a, 48, 74, E*32)
        a.e("s_mul_i32 s46, s2, 391\nv_add_u32 v126, s46, v0\nv_lshlrev_b32 v126, 7, v126")
        a.e("v_cmp_gt_u32 vcc, 391, v0\ns_and_saveexec_b64 s[54:55], vcc\nbuffer_load_dword v125, v126, s[48:51], 0 offen\ns_mov_b64 exec, s[54:55]")
        if opt.get("p1_wm", 0) >= 2:
            lw = a.label("P1WD")
            a.e(f"s_cmp_lg_u32 s{sWave}, 15\ns_cbranch_scc1 {lw}")
            srd(a, 48, 62, E*2)
            a.e("s_mul_i32 s46, s2, 25\nv_and_b32 v126, 63, v0\nv_add_u32 v126, s46, v126\nv_lshlrev_b32 v126, 7, v126")
            a.e("s_mov_b64 exec, 0x1ffffff\nbuffer_load_dword v125, v126, s[48:51], 0 offen\ns_mov_b64 exec, -1")
            a.e(f"{lw}:")
            lw = a.label("P1WW")
            a.e(f"s_cmp_lg_u32 s{sWave}, 14\ns_cbranch_scc1 {lw}\ns_cmp_ge_u32 s2, 8\ns_cbranch_scc1 {lw}")
            a.e("v_and_b32 v126, 63, v0\nv_lshlrev_b32 v126, 7, v126")
            for base, nb in ((72, 16), (64, 256), (66, 768), (68, 512), (70, 512)):
                srd(a, 48, base, nb)
                a.e("buffer_load_dword v125, v126, s[48:51], 0 offen")
            a.e(f"{lw}:")
    if opt.get("p1_wm") and not opt.get("p1_wl", 0): warm()
    a.e("s_barrier")

    def set_tile(expr_add):
        a.e(f"s_add_u32 s{sTile}, s2, {expr_add}")
        a.e(f"s_mul_i32 s{sTI}, s{sTile}, {TS*4}\ns_mul_i32 s{sTA}, s{sTile}, {TS*2}")
    V2 = opt.get("p1v", 1) == 2
    sNI, sNA = 47, 52
    def issue_quad(j):
        vo = "v1" if j < 6 else "v3"; va = "v2" if j < 6 else "v4"
        a.e(f"s_add_u32 s{sT0}, s{sTI}, {j*16384}\ns_add_u32 s{sT1}, s{sTA}, {j*8192}")
        a.e(f"buffer_load_dwordx4 {vr(O(j),4)}, {vo}, s[{S_OUT}:{S_OUT+3}], s{sT0} offen{ntflag}")
        a.e(f"buffer_load_dwordx4 {vr(I(j),4)}, {vo}, s[{S_IN}:{S_IN+3}], s{sT0} offen{ntflag}")
        a.e(f"buffer_load_dwordx2 {vr(G(j),2)}, {va}, s[{S_ANG}:{S_ANG+3}], s{sT1} offen{ntflag}")
    def issue_O(j):
        vo = "v1" if j < 6 else "v3"
        a.e(f"s_add_u32 s{sT0}, s{sNI}, {j*16384}")
        a.e(f"buffer_load_dwordx4 {vr(O(j),4)}, {vo}, s[{S_OUT}:{S_OUT+3}], s{sT0} offen{ntflag}")
    def issue_IG(j):
        vo = "v1" if j < 6 else "v3"; va = "v2" if j < 6 else "v4"
        a.e(f"s_add_u32 s{sT0}, s{sNI}, {j*16384}\ns_add_u32 s{sT1}, s{sNA}, {j*8192}")
        a.e(f"buffer_load_dwordx4 {vr(I(j),4)}, {vo}, s[{S_IN}:{S_IN+3}], s{sT0} offen{ntflag}")
        a.e(f"buffer_load_dwordx2 {vr(G(j),2)}, {va}, s[{S_ANG}:{S_ANG+3}], s{sT1} offen{ntflag}")
    def finalize(j, nxt):
        for k in range(4):
            a.e(f"v_lshl_or_b32 v{RK(j)+k}, v{O(j)+k}, 16, v{RK(j)+k}")
        if nxt: issue_O(j)

    def guard_last(begin):
        if begin:
            lab = a.label("P1_SKIPQ"); guard_last.lab = lab
            a.e(f"v_cmp_gt_u32 vcc, {LASTQ}, v0\ns_and_saveexec_b64 s[44:45], vcc\ns_cbranch_execz {lab}")
        else:
            a.e(f"{guard_last.lab}:\ns_mov_b64 exec, s[44:45]")

    def convert(j, cnt, younger, nxt=False):
        a.e(f"s_waitcnt vmcnt({younger})")
        if V2 and j >= 1:
            a.e("s_waitcnt lgkmcnt(0)")
            finalize(j-1, nxt)
        if j == 6: guard_last(True)
        t = T0
        for k in range(4):
            o, i = O(j)+k, I(j)+k
            a.e(f"v_mul_hi_u32_u24 v{t}, s{sM1}, v{o}")
            a.e(f"v_mul_hi_u32_u24 v{t+1}, s{sM2}, v{i}")
            a.e(f"v_mad_i32_i24 v{t+2}, v{t}, s{sNeg}, v{o}")
            a.e(f"v_lshl_add_u32 v{t+1}, v{t+1}, 8, v{t}")
            a.e(f"v_and_b32 v{t+3}, 15, v{t+2}")
            a.e(f"v_lshlrev_b32 v{o}, 2, v{t+1}")
            a.e(f"v_lshl_or_b32 v{t+3}, v{i}, 5, v{t+3}")
            a.e(f"v_lshrrev_b32 v{t+2}, 4, v{t+2}")
            a.e(f"ds_add_rtn_u32 v{RK(j)+k}, v{o}, v5 offset:{cnt}")
            a.e(f"v_lshl_or_b32 v{i}, v{t+2}, 24, v{t+3}")
        if j == 6: guard_last(False)

    def prefix(cnt, first=True):
        x, cc, y, w, c1 = T0, T0+1, T0+2, T0+3, T0+5
        p0, p1_ = T0+4, T0+5
        a.e("s_waitcnt lgkmcnt(0)")
        if V2: finalize(6, first)
        a.e("s_barrier")
        if S8:
            a.e(f"v_lshlrev_b32 v{T0+6}, 3, v0\nds_read_b64 v[{p0}:{p1_}], v{T0+6}")
        else:
            a.e(f"ds_read_b32 v{cc}, v6 offset:{cnt}")
        a.e(f"v_lshrrev_b32 v{w}, 4, v0\nv_and_b32 v{w}, 0xfc, v{w}")
        if S8:
            a.e(f"s_waitcnt lgkmcnt(0)\nv_add_u32 v{cc}, v{p0}, v{p1_}\nv_mov_b32 v{x}, v{cc}")
        else:
            a.e(f"s_waitcnt lgkmcnt(0)\nv_mov_b32 v{x}, v{cc}")
        for sh in (1, 2, 4, 8):
            a.e(f"s_nop 1\nv_add_u32_dpp v{x}, v{x}, v{x} row_shr:{sh} row_mask:0xf bank_mask:0xf")
        a.e(f"s_nop 1\nv_add_u32_dpp v{x}, v{x}, v{x} row_bcast:15 row_mask:0xa bank_mask:0xf")
        a.e(f"s_nop 1\nv_add_u32_dpp v{x}, v{x}, v{x} row_bcast:31 row_mask:0xc bank_mask:0xf")
        a.e(f"s_mov_b32 exec_lo, 0\ns_brev_b32 exec_hi, 1")
        a.e(f"ds_write_b32 v{w}, v{x} offset:{WSUM}")
        a.e("s_mov_b64 exec, -1")
        a.e("s_waitcnt lgkmcnt(0)\ns_barrier")
        a.e(f"v_and_b32 v{y}, 15, v0\nv_lshlrev_b32 v{y}, 2, v{y}\nds_read_b32 v{y}, v{y} offset:{WSUM}")
        a.e(f"s_waitcnt lgkmcnt(0)\nv_mov_b32 v{w}, v{y}")
        for sh in (1, 2, 4, 8):
            a.e(f"s_nop 1\nv_add_u32_dpp v{w}, v{w}, v{w} row_shr:{sh} row_mask:0xf bank_mask:0xf")
        a.e(f"v_sub_u32 v{w}, v{w}, v{y}\ns_nop 0\nv_readlane_b32 s{sT2}, v{w}, s{sWave}")
        a.e(f"v_sub_u32 v{y}, v{x}, v{cc}\ns_nop 1\nv_add_u32 v{y}, s{sT2}, v{y}")
        a.e(f"v_add_u32 v{x}, s{sT2}, v{x}")
        a.e(f"s_lshl_b32 s{sT0}, s{sTile}, 1")
        if S8:
            a.e(f"v_add_u32 v{p1_}, v{y}, v{p0}\nv_mov_b32 v{p0}, v{y}")
            a.e(f"ds_write_b64 v{T0+6}, v[{p0}:{p1_}]")
            v9 = "v11" if opt.get("p1_nooff") else "v9"
            if V2:
                if first:
                    a.e(f"v_mov_b32 v122, v{p0}\nv_mov_b32 v123, v{p1_}\nv_mov_b32 v124, v{x}")
                else:
                    a.e(f"s_lshl_b32 s53, s2, 2")
                    a.e(f"v_lshl_or_b32 v122, v{p0}, 16, v122\nv_lshl_or_b32 v123, v{p1_}, 16, v123\nv_lshl_or_b32 v124, v{x}, 16, v124")
                    if not opt.get("p1_late", 1):
                        a.e(f"buffer_store_dword v122, {v9}, s[{S_OFF}:{S_OFF+3}], s53 offen")
                        a.e(f"buffer_store_dword v123, {v9}, s[{S_OFF}:{S_OFF+3}], s53 offen offset:1024")
                        a.e(f"buffer_store_dword v124, v10, s[{S_OFF}:{S_OFF+3}], s53 offen")
            else:
                a.e(f"buffer_store_short v{p0}, {v9}, s[{S_OFF}:{S_OFF+3}], s{sT0} offen")
                a.e(f"buffer_store_short v{p1_}, {v9}, s[{S_OFF}:{S_OFF+3}], s{sT0} offen offset:1024")
        else:
            a.e(f"ds_write_b32 v6, v{y} offset:{cnt}")
            a.e(f"buffer_store_short v{y}, v9, s[{S_OFF}:{S_OFF+3}], s{sT0} offen")
        if not V2: a.e(f"buffer_store_short v{x}, v10, s[{S_OFF}:{S_OFF+3}], s{sT0} offen")
        a.e("s_waitcnt lgkmcnt(0)\ns_barrier")

    def scatter(cnt, next_loads):
        st = lambda j: T0 + 4*(j & 1)
        tmp = T0 + 8
        def reads(j):
            if j == 6: guard_last(True)
            for k in range(4):
                if V2:
                    a.e(f"v_lshrrev_b32 v{st(j)+k}, 16, v{RK(j)+k}")
            for k in range(4):
                if V2: a.e(f"ds_read_b32 v{st(j)+k}, v{st(j)+k} offset:{cnt}")
                else: a.e(f"ds_read_b32 v{st(j)+k}, v{O(j)+k} offset:{cnt}")
            if j == 6: guard_last(False)
        reads(0)
        for j in range(NQ):
            if j+1 < NQ:
                reads(j+1)
                a.e("s_waitcnt lgkmcnt(4)" if j+1 < 6 else "s_waitcnt lgkmcnt(0)")
            else:
                a.e("s_waitcnt lgkmcnt(0)")
            if j == 6: guard_last(True)
            for k in range(4):
                p = st(j)+k
                if V2: a.e(f"v_add_u32_sdwa v{p}, v{p}, v{RK(j)+k} dst_sel:DWORD dst_unused:UNUSED_PAD src0_sel:DWORD src1_sel:WORD_0")
                else: a.e(f"v_add_u32 v{p}, v{p}, v{RK(j)+k}")
                a.e(f"v_lshlrev_b32 v{tmp}, 2, v{p}")
                a.e(f"v_lshl_add_u32 v{tmp+1}, v{p}, 1, s{sB}")
                a.e(f"ds_write_b32 v{tmp}, v{I(j)+k} offset:{ABASE}")
                g = G(j) + (k >> 1)
                a.e(f"ds_write_b16{'_d16_hi' if (k & 1) else ''} v{tmp+1}, v{g}")
            if j == 6: guard_last(False)
            if next_loads:
                if V2: issue_IG(j)
                else: issue_quad(j)
            elif V2 and opt.get("p1_late", 1):
                v9 = "v11" if opt.get("p1_nooff") else "v9"
                if j == 0: a.e(f"buffer_store_dword v122, {v9}, s[{S_OFF}:{S_OFF+3}], s53 offen")
                if j == 1 and opt.get("p1_wm") and opt.get("p1_wl", 0): warm()
                if j == 3: a.e(f"buffer_store_dword v123, {v9}, s[{S_OFF}:{S_OFF+3}], s53 offen offset:1024")
                if j == 5: a.e(f"buffer_store_dword v124, v10, s[{S_OFF}:{S_OFF+3}], s53 offen")
        a.e("s_waitcnt lgkmcnt(0)\ns_barrier")

    def copyout():
        tr = lambda q: 94 + 4*q
        av, bv = T0, T0+1
        a.e(f"v_lshlrev_b32 v{av}, 3, v0\nv_add_u32 v{av}, {ABASE}, v{av}")
        a.e(f"v_add_u32 v{bv}, s{sB}, v6")
        it = 0
        while it < NPI:
            n = min(7, NPI-it)
            for q in range(n):
                i2 = it+q
                if i2*8192 > 65535-8:
                    a.e(f"v_add_u32 v{T0+2}, {i2*8192}, v{av}")
                    a.e(f"ds_read_b64 {vr(tr(q),2)}, v{T0+2}")
                else:
                    a.e(f"ds_read_b64 {vr(tr(q),2)}, v{av} offset:{i2*8192}")
                a.e(f"ds_read_b32 v{tr(q)+2}, v{bv} offset:{i2*4096}")
            for q in range(n):
                i2 = it+q
                a.e(f"s_waitcnt lgkmcnt({2*(n-1-q)})")
                a.e(f"s_add_u32 s{sT0}, s{sTR}, {i2*12288}")
                vo = "v7" if i2 < NPI-1 else "v8"
                if opt.get("p1_nost"): vo = "v11"
                a.e(f"buffer_store_dwordx3 {vr(tr(q),3)}, {vo}, s[{S_REC}:{S_REC+3}], s{sT0} offen" + ["", " nt", " sc1", " sc0 sc1", " sc0", " sc1 nt"][opt.get("p1_st", 0)])
            it += n
            if it < NPI:
                a.e("s_nop 1")
    if V2:
        PR = opt.get("p1prof")
        nst = [0]
        def stamp():
            if not PR: return
            k = nst[0]; nst[0] += 1
            a.e(f"s_memtime s[{60+2*k}:{61+2*k}]")
        stamp()
        a.e(f"s_lshl_b32 s{sTile}, s2, 1")
        a.e(f"s_mul_i32 s{sTI}, s{sTile}, {TS*4}\ns_mul_i32 s{sTA}, s{sTile}, {TS*2}")
        a.e(f"s_add_u32 s{sNI}, s{sTI}, {TS*4}\ns_add_u32 s{sNA}, s{sTA}, {TS*2}")
        for j in range(NQ): issue_quad(j)
        stamp()
        for j in range(NQ):
            convert(j, CNT0, 3*(6-j) + max(j-1, 0), True)
            if j == 0: stamp()
        stamp()
        prefix(CNT0, True)
        stamp()
        a.e(f"s_mul_i32 s{sTR}, s{sTile}, {TS*6}")
        scatter(CNT0, True)
        stamp()
        a.e(f"v_lshlrev_b32 v{T0+6}, 3, v0\nv_mov_b32 v{T0+4}, 0\nv_mov_b32 v{T0+5}, 0\nds_write_b64 v{T0+6}, v[{T0+4}:{T0+5}]")
        if opt.get("p1_eb", 1):
            a.e("s_waitcnt lgkmcnt(0)\ns_barrier")
            copyout()
        else:
            copyout()
            a.e("s_waitcnt lgkmcnt(0)\ns_barrier")
        stamp()
        for j in range(NQ):
            convert(j, CNT0, 2*(6-j) + NPI, False)
            if j == 0: stamp()
        stamp()
        prefix(CNT0, False)
        stamp()
        scatter(CNT0, False)
        stamp()
        a.e(f"s_add_u32 s{sTR}, s{sTR}, {TS*6}")
        copyout()
        stamp()
        if PR:
            a.e("s_waitcnt vmcnt(0)")
            stamp()
            a.e("s_waitcnt lgkmcnt(0)")
            sk = a.label("P1PR")
            a.e(f"s_and_b32 s58, s2, 63\ns_cmp_lg_u32 s58, 0\ns_cbranch_scc1 {sk}\ns_cmp_lg_u32 s{sWave}, {opt.get('p1pw', 0)}\ns_cbranch_scc1 {sk}")
            a.e("s_load_dwordx2 s[58:59], s[0:1], 96\ns_waitcnt lgkmcnt(0)")
            a.e("s_lshr_b32 s57, s2, 6\ns_lshl_b32 s57, s57, 6\nv_mov_b32 v12, s57")
            for k in range(nst[0]):
                a.e(f"s_sub_u32 s56, s{60+2*k}, s60\nv_mov_b32 v13, s56\nglobal_store_dword v12, v13, s[58:59] offset:{4*k}")
            a.e(f"{sk}:")
    else:
        set_tile(0)
        for j in range(NQ): issue_quad(j)
        for j in range(NQ): convert(j, CNT0, 3*(6-j))
        prefix(CNT0)
        a.e(f"s_mul_i32 s{sTR}, s{sTile}, {TS*6}")
        a.e(f"s_mov_b32 s46, s{sTR}")
        set_tile(NTILE//2)
        scatter(CNT0, True)
        a.e(f"s_mov_b32 s{sTR}, s46")
        C1 = CNT0 if S8 else CNT1
        if S8:
            a.e(f"v_lshlrev_b32 v{T0+6}, 3, v0\nv_mov_b32 v{T0+4}, 0\nv_mov_b32 v{T0+5}, 0\nds_write_b64 v{T0+6}, v[{T0+4}:{T0+5}]")
        copyout()
        if S8: a.e("s_waitcnt lgkmcnt(0)\ns_barrier")
        for j in range(NQ): convert(j, C1, 3*(6-j) + NPI)
        prefix(C1)
        scatter(C1, False)
        a.e(f"s_mul_i32 s{sTR}, s{sTile}, {TS*6}")
        copyout()
    if opt.get("rt2"):
        a.e("s_waitcnt vmcnt(0) lgkmcnt(0)\ns_memrealtime s[56:57]\ns_load_dwordx2 s[58:59], s[0:1], 104\ns_waitcnt lgkmcnt(0)")
        a.e(f"s_add_u32 s58, s58, {121<<20}\ns_addc_u32 s59, s59, 0\ns_lshl_b32 s60, s2, 8\ns_lshl_b32 s61, s{sWave}, 4\ns_add_u32 s60, s60, s61")
        a.e("v_mov_b32 v12, s60\nv_mov_b32 v16, s54\nv_mov_b32 v17, s55\nv_mov_b32 v18, s56\nv_mov_b32 v19, s57\nglobal_store_dwordx4 v12, v[16:19], s[58:59]")
    a.e("P1_END:\ns_endpgm")

def kd(name, vgpr, sgpr, accum):
    return f""".amdhsa_kernel {name}
  .amdhsa_next_free_vgpr {vgpr}
  .amdhsa_next_free_sgpr {sgpr}
  .amdhsa_accum_offset {accum}
  .amdhsa_group_segment_fixed_size 0
  .amdhsa_kernarg_size 112
  .amdhsa_user_sgpr_count 2
  .amdhsa_user_sgpr_kernarg_segment_ptr 1
  .amdhsa_system_sgpr_workgroup_id_x 1
  .amdhsa_float_denorm_mode_32 3
  .amdhsa_float_denorm_mode_16_64 3
.end_amdhsa_kernel
"""
```

```python
from common import *

CNT0, CNT1, WSUM, ABASE = 0, 4096, 8192, 8448
BBASE = ABASE + TS*4
P1_LDS = BBASE + TS*2
NQ = 7
LASTQ = TS//4 - 6*1024
NPI = 13
LASTP = TS//2 - 12*1024

def gen_p1(a, name, opt):
    S8 = opt.get('S', 8) == 8
    NBIN = 2048 if S8 else 1024
    MS = 85899 if S8 else M_S
    if opt.get('nsl'): MS = (opt['nsl'] << 32)//400000
    QB = 24
    O = lambda j: QB + 10*j
    I = lambda j: QB + 10*j + 4
    G = lambda j: QB + 10*j + 8
    RK = lambda j: 94 + 4*j
    T0 = 12
    S_IN, S_OUT, S_ANG, S_REC, S_OFF = 8, 12, 16, 20, 24
    sM1, sM2, sNeg, sB, sTile, sTI, sTA, sTR, sWave = 32, 33, 34, 35, 36, 37, 38, 39, 40
    sT0, sT1, sT2 = 41, 42, 43
    ntflag = " nt" if opt.get("p1_nt") else ""
    a.e(f".p2align 8\n.type {name},@function\n{name}:")
    a.e(f"s_cmp_ge_u32 s2, {NTILE//2}\ns_cbranch_scc1 P1_END")
    if opt.get("rt2"): a.e("s_memrealtime s[54:55]")
    a.e("s_load_dwordx4 s[4:7], s[0:1], 8")
    a.e("s_load_dwordx2 s[28:29], s[0:1], 32")
    a.e("s_load_dwordx2 s[30:31], s[0:1], 104")
    if opt.get("p1_wm"):
        a.e("s_load_dwordx2 s[74:75], s[0:1], 0")
        if opt.get("p1_wm", 0) >= 2:
            a.e("s_load_dwordx2 s[62:63], s[0:1], 24\ns_load_dwordx2 s[72:73], s[0:1], 40\ns_load_dwordx4 s[64:67], s[0:1], 56\ns_load_dwordx4 s[68:71], s[0:1], 72")
    a.e("v_lshlrev_b32 v1, 4, v0\nv_lshlrev_b32 v2, 3, v0")
    a.e("v_bfrev_b32 v11, 1")
    a.e(f"v_cmp_gt_u32 vcc, {LASTQ}, v0")
    a.e(f"s_mov_b32 s{sM1}, {M_B}\ns_mov_b32 s{sM2}, {MS}\ns_mov_b32 s{sNeg}, {-BS}\ns_mov_b32 s{sB}, {BBASE}")
    a.e("v_cndmask_b32 v3, v11, v1, vcc\nv_cndmask_b32 v4, v11, v2, vcc")
    a.e("v_mov_b32 v5, 1\nv_lshlrev_b32 v6, 2, v0\nv_mul_u32_u24 v7, 12, v0")
    a.e(f"v_cmp_gt_u32 vcc, {LASTP}, v0\nv_lshlrev_b32 v9, {11 if S8 else 10}, v0\ns_nop 0\nv_cndmask_b32 v8, v11, v7, vcc")
    a.e(f"v_cmp_eq_u32 vcc, 1023, v0\nv_mov_b32 v12, {NBIN*1024}\ns_nop 0\nv_cndmask_b32 v10, v11, v12, vcc")
    a.e(f"v_lshrrev_b32 v12, 6, v0\ns_nop 0\nv_readfirstlane_b32 s{sWave}, v12")
    a.e("v_mov_b32 v13, 0\nds_write_b32 v6, v13 offset:%d\nds_write_b32 v6, v13 offset:%d" % (CNT0, CNT1))
    a.e("s_waitcnt lgkmcnt(0)")
    srd(a, S_IN, 4, T*4); srd(a, S_OUT, 6, T*4); srd(a, S_ANG, 28, T*2); srd(a, S_REC, 30, NTILE*TS*6)
    a.e(f"s_add_u32 s30, s30, {OFFS_OFF}\ns_addc_u32 s31, s31, 0")
    srd(a, S_OFF, 30, (NBIN+1)*512*2)
    def warm():
        if not opt.get("p1_nom"):
            srd(a, 48, 74, E*32)
            a.e("s_mul_i32 s46, s2, 391\nv_add_u32 v126, s46, v0\nv_lshlrev_b32 v126, 7, v126")
            a.e("v_cmp_gt_u32 vcc, 391, v0\ns_and_saveexec_b64 s[54:55], vcc\nbuffer_load_dword v125, v126, s[48:51], 0 offen\ns_mov_b64 exec, s[54:55]")
        if opt.get("p1_wm", 0) >= 2:
            lw = a.label("P1WD")
            a.e(f"s_cmp_lg_u32 s{sWave}, 15\ns_cbranch_scc1 {lw}")
            srd(a, 48, 62, E*2)
            a.e("s_mul_i32 s46, s2, 25\nv_and_b32 v126, 63, v0\nv_add_u32 v126, s46, v126\nv_lshlrev_b32 v126, 7, v126")
            a.e("s_mov_b64 exec, 0x1ffffff\nbuffer_load_dword v125, v126, s[48:51], 0 offen\ns_mov_b64 exec, -1")
            a.e(f"{lw}:")
            lw = a.label("P1WW")
            a.e(f"s_cmp_lg_u32 s{sWave}, 14\ns_cbranch_scc1 {lw}\ns_cmp_ge_u32 s2, 8\ns_cbranch_scc1 {lw}")
            a.e("v_and_b32 v126, 63, v0\nv_lshlrev_b32 v126, 7, v126")
            for base, nb in ((72, 16), (64, 256), (66, 768), (68, 512), (70, 512)):
                srd(a, 48, base, nb)
                a.e("buffer_load_dword v125, v126, s[48:51], 0 offen")
            a.e(f"{lw}:")
    if opt.get("p1_wm") and not opt.get("p1_wl", 0): warm()
    a.e("s_barrier")

    def set_tile(expr_add):
        a.e(f"s_add_u32 s{sTile}, s2, {expr_add}")
        a.e(f"s_mul_i32 s{sTI}, s{sTile}, {TS*4}\ns_mul_i32 s{sTA}, s{sTile}, {TS*2}")
    V2 = opt.get("p1v", 1) == 2
    sNI, sNA = 47, 52
    def issue_quad(j):
        vo = "v1" if j < 6 else "v3"; va = "v2" if j < 6 else "v4"
        a.e(f"s_add_u32 s{sT0}, s{sTI}, {j*16384}\ns_add_u32 s{sT1}, s{sTA}, {j*8192}")
        a.e(f"buffer_load_dwordx4 {vr(O(j),4)}, {vo}, s[{S_OUT}:{S_OUT+3}], s{sT0} offen{ntflag}")
        a.e(f"buffer_load_dwordx4 {vr(I(j),4)}, {vo}, s[{S_IN}:{S_IN+3}], s{sT0} offen{ntflag}")
        a.e(f"buffer_load_dwordx2 {vr(G(j),2)}, {va}, s[{S_ANG}:{S_ANG+3}], s{sT1} offen{ntflag}")
    def issue_O(j):
        vo = "v1" if j < 6 else "v3"
        a.e(f"s_add_u32 s{sT0}, s{sNI}, {j*16384}")
        a.e(f"buffer_load_dwordx4 {vr(O(j),4)}, {vo}, s[{S_OUT}:{S_OUT+3}], s{sT0} offen{ntflag}")
    def issue_IG(j):
        vo = "v1" if j < 6 else "v3"; va = "v2" if j < 6 else "v4"
        a.e(f"s_add_u32 s{sT0}, s{sNI}, {j*16384}\ns_add_u32 s{sT1}, s{sNA}, {j*8192}")
        a.e(f"buffer_load_dwordx4 {vr(I(j),4)}, {vo}, s[{S_IN}:{S_IN+3}], s{sT0} offen{ntflag}")
        a.e(f"buffer_load_dwordx2 {vr(G(j),2)}, {va}, s[{S_ANG}:{S_ANG+3}], s{sT1} offen{ntflag}")
    def finalize(j, nxt):
        for k in range(4):
            a.e(f"v_lshl_or_b32 v{RK(j)+k}, v{O(j)+k}, 16, v{RK(j)+k}")
        if nxt: issue_O(j)

    def guard_last(begin):
        if begin:
            lab = a.label("P1_SKIPQ"); guard_last.lab = lab
            a.e(f"v_cmp_gt_u32 vcc, {LASTQ}, v0\ns_and_saveexec_b64 s[44:45], vcc\ns_cbranch_execz {lab}")
        else:
            a.e(f"{guard_last.lab}:\ns_mov_b64 exec, s[44:45]")

    def convert(j, cnt, younger, nxt=False):
        a.e(f"s_waitcnt vmcnt({younger})")
        if V2 and j >= 1:
            a.e("s_waitcnt lgkmcnt(0)")
            finalize(j-1, nxt)
        if j == 6: guard_last(True)
        t = T0
        for k in range(4):
            o, i = O(j)+k, I(j)+k
            a.e(f"v_mul_hi_u32_u24 v{t}, s{sM1}, v{o}")
            a.e(f"v_mul_hi_u32_u24 v{t+1}, s{sM2}, v{i}")
            a.e(f"v_mad_i32_i24 v{t+2}, v{t}, s{sNeg}, v{o}")
            a.e(f"v_lshl_add_u32 v{t+1}, v{t+1}, 8, v{t}")
            a.e(f"v_and_b32 v{t+3}, 15, v{t+2}")
            a.e(f"v_lshlrev_b32 v{o}, 2, v{t+1}")
            a.e(f"v_lshl_or_b32 v{t+3}, v{i}, 5, v{t+3}")
            a.e(f"v_lshrrev_b32 v{t+2}, 4, v{t+2}")
            a.e(f"ds_add_rtn_u32 v{RK(j)+k}, v{o}, v5 offset:{cnt}")
            a.e(f"v_lshl_or_b32 v{i}, v{t+2}, 24, v{t+3}")
        if j == 6: guard_last(False)

    def prefix(cnt, first=True):
        x, cc, y, w, c1 = T0, T0+1, T0+2, T0+3, T0+5
        p0, p1_ = T0+4, T0+5
        a.e("s_waitcnt lgkmcnt(0)")
        if V2: finalize(6, first)
        a.e("s_barrier")
        if S8:
            a.e(f"v_lshlrev_b32 v{T0+6}, 3, v0\nds_read_b64 v[{p0}:{p1_}], v{T0+6}")
        else:
            a.e(f"ds_read_b32 v{cc}, v6 offset:{cnt}")
        a.e(f"v_lshrrev_b32 v{w}, 4, v0\nv_and_b32 v{w}, 0xfc, v{w}")
        if S8:
            a.e(f"s_waitcnt lgkmcnt(0)\nv_add_u32 v{cc}, v{p0}, v{p1_}\nv_mov_b32 v{x}, v{cc}")
        else:
            a.e(f"s_waitcnt lgkmcnt(0)\nv_mov_b32 v{x}, v{cc}")
        for sh in (1, 2, 4, 8):
            a.e(f"s_nop 1\nv_add_u32_dpp v{x}, v{x}, v{x} row_shr:{sh} row_mask:0xf bank_mask:0xf")
        a.e(f"s_nop 1\nv_add_u32_dpp v{x}, v{x}, v{x} row_bcast:15 row_mask:0xa bank_mask:0xf")
        a.e(f"s_nop 1\nv_add_u32_dpp v{x}, v{x}, v{x} row_bcast:31 row_mask:0xc bank_mask:0xf")
        a.e(f"s_mov_b32 exec_lo, 0\ns_brev_b32 exec_hi, 1")
        a.e(f"ds_write_b32 v{w}, v{x} offset:{WSUM}")
        a.e("s_mov_b64 exec, -1")
        a.e("s_waitcnt lgkmcnt(0)\ns_barrier")
        a.e(f"v_and_b32 v{y}, 15, v0\nv_lshlrev_b32 v{y}, 2, v{y}\nds_read_b32 v{y}, v{y} offset:{WSUM}")
        a.e(f"s_waitcnt lgkmcnt(0)\nv_mov_b32 v{w}, v{y}")
        for sh in (1, 2, 4, 8):
            a.e(f"s_nop 1\nv_add_u32_dpp v{w}, v{w}, v{w} row_shr:{sh} row_mask:0xf bank_mask:0xf")
        a.e(f"v_sub_u32 v{w}, v{w}, v{y}\ns_nop 0\nv_readlane_b32 s{sT2}, v{w}, s{sWave}")
        a.e(f"v_sub_u32 v{y}, v{x}, v{cc}\ns_nop 1\nv_add_u32 v{y}, s{sT2}, v{y}")
        a.e(f"v_add_u32 v{x}, s{sT2}, v{x}")
        a.e(f"s_lshl_b32 s{sT0}, s{sTile}, 1")
        if S8:
            a.e(f"v_add_u32 v{p1_}, v{y}, v{p0}\nv_mov_b32 v{p0}, v{y}")
            a.e(f"ds_write_b64 v{T0+6}, v[{p0}:{p1_}]")
            v9 = "v11" if opt.get("p1_nooff") else "v9"
            if V2:
                if first:
                    a.e(f"v_mov_b32 v122, v{p0}\nv_mov_b32 v123, v{p1_}\nv_mov_b32 v124, v{x}")
                else:
                    a.e(f"s_lshl_b32 s53, s2, 2")
                    a.e(f"v_lshl_or_b32 v122, v{p0}, 16, v122\nv_lshl_or_b32 v123, v{p1_}, 16, v123\nv_lshl_or_b32 v124, v{x}, 16, v124")
                    if not opt.get("p1_late", 1):
                        a.e(f"buffer_store_dword v122, {v9}, s[{S_OFF}:{S_OFF+3}], s53 offen")
                        a.e(f"buffer_store_dword v123, {v9}, s[{S_OFF}:{S_OFF+3}], s53 offen offset:1024")
                        a.e(f"buffer_store_dword v124, v10, s[{S_OFF}:{S_OFF+3}], s53 offen")
            else:
                a.e(f"buffer_store_short v{p0}, {v9}, s[{S_OFF}:{S_OFF+3}], s{sT0} offen")
                a.e(f"buffer_store_short v{p1_}, {v9}, s[{S_OFF}:{S_OFF+3}], s{sT0} offen offset:1024")
        else:
            a.e(f"ds_write_b32 v6, v{y} offset:{cnt}")
            a.e(f"buffer_store_short v{y}, v9, s[{S_OFF}:{S_OFF+3}], s{sT0} offen")
        if not V2: a.e(f"buffer_store_short v{x}, v10, s[{S_OFF}:{S_OFF+3}], s{sT0} offen")
        a.e("s_waitcnt lgkmcnt(0)\ns_barrier")

    def scatter(cnt, next_loads):
        st = lambda j: T0 + 4*(j & 1)
        tmp = T0 + 8
        def reads(j):
            if j == 6: guard_last(True)
            for k in range(4):
                if V2:
                    a.e(f"v_lshrrev_b32 v{st(j)+k}, 16, v{RK(j)+k}")
            for k in range(4):
                if V2: a.e(f"ds_read_b32 v{st(j)+k}, v{st(j)+k} offset:{cnt}")
                else: a.e(f"ds_read_b32 v{st(j)+k}, v{O(j)+k} offset:{cnt}")
            if j == 6: guard_last(False)
        reads(0)
        for j in range(NQ):
            if j+1 < NQ:
                reads(j+1)
                a.e("s_waitcnt lgkmcnt(4)" if j+1 < 6 else "s_waitcnt lgkmcnt(0)")
            else:
                a.e("s_waitcnt lgkmcnt(0)")
            if j == 6: guard_last(True)
            for k in range(4):
                p = st(j)+k
                if V2: a.e(f"v_add_u32_sdwa v{p}, v{p}, v{RK(j)+k} dst_sel:DWORD dst_unused:UNUSED_PAD src0_sel:DWORD src1_sel:WORD_0")
                else: a.e(f"v_add_u32 v{p}, v{p}, v{RK(j)+k}")
                a.e(f"v_lshlrev_b32 v{tmp}, 2, v{p}")
                a.e(f"v_lshl_add_u32 v{tmp+1}, v{p}, 1, s{sB}")
                a.e(f"ds_write_b32 v{tmp}, v{I(j)+k} offset:{ABASE}")
                g = G(j) + (k >> 1)
                a.e(f"ds_write_b16{'_d16_hi' if (k & 1) else ''} v{tmp+1}, v{g}")
            if j == 6: guard_last(False)
            if next_loads:
                if V2: issue_IG(j)
                else: issue_quad(j)
            elif V2 and opt.get("p1_late", 1):
                v9 = "v11" if opt.get("p1_nooff") else "v9"
                if j == 0: a.e(f"buffer_store_dword v122, {v9}, s[{S_OFF}:{S_OFF+3}], s53 offen")
                if j == 1 and opt.get("p1_wm") and opt.get("p1_wl", 0): warm()
                if j == 3: a.e(f"buffer_store_dword v123, {v9}, s[{S_OFF}:{S_OFF+3}], s53 offen offset:1024")
                if j == 5: a.e(f"buffer_store_dword v124, v10, s[{S_OFF}:{S_OFF+3}], s53 offen")
        a.e("s_waitcnt lgkmcnt(0)\ns_barrier")

    def copyout():
        tr = lambda q: 94 + 4*q
        av, bv = T0, T0+1
        a.e(f"v_lshlrev_b32 v{av}, 3, v0\nv_add_u32 v{av}, {ABASE}, v{av}")
        a.e(f"v_add_u32 v{bv}, s{sB}, v6")
        it = 0
        while it < NPI:
            n = min(7, NPI-it)
            for q in range(n):
                i2 = it+q
                if i2*8192 > 65535-8:
                    a.e(f"v_add_u32 v{T0+2}, {i2*8192}, v{av}")
                    a.e(f"ds_read_b64 {vr(tr(q),2)}, v{T0+2}")
                else:
                    a.e(f"ds_read_b64 {vr(tr(q),2)}, v{av} offset:{i2*8192}")
                a.e(f"ds_read_b32 v{tr(q)+2}, v{bv} offset:{i2*4096}")
            for q in range(n):
                i2 = it+q
                a.e(f"s_waitcnt lgkmcnt({2*(n-1-q)})")
                a.e(f"s_add_u32 s{sT0}, s{sTR}, {i2*12288}")
                vo = "v7" if i2 < NPI-1 else "v8"
                if opt.get("p1_nost"): vo = "v11"
                a.e(f"buffer_store_dwordx3 {vr(tr(q),3)}, {vo}, s[{S_REC}:{S_REC+3}], s{sT0} offen" + ["", " nt", " sc1", " sc0 sc1", " sc0", " sc1 nt"][opt.get("p1_st", 0)])
            it += n
            if it < NPI:
                a.e("s_nop 1")
    if V2:
        PR = opt.get("p1prof")
        nst = [0]
        def stamp():
            if not PR: return
            k = nst[0]; nst[0] += 1
            a.e(f"s_memtime s[{60+2*k}:{61+2*k}]")
        stamp()
        a.e(f"s_lshl_b32 s{sTile}, s2, 1")
        a.e(f"s_mul_i32 s{sTI}, s{sTile}, {TS*4}\ns_mul_i32 s{sTA}, s{sTile}, {TS*2}")
        a.e(f"s_add_u32 s{sNI}, s{sTI}, {TS*4}\ns_add_u32 s{sNA}, s{sTA}, {TS*2}")
        for j in range(NQ): issue_quad(j)
        stamp()
        for j in range(NQ):
            convert(j, CNT0, 3*(6-j) + max(j-1, 0), True)
            if j == 0: stamp()
        stamp()
        prefix(CNT0, True)
        stamp()
        a.e(f"s_mul_i32 s{sTR}, s{sTile}, {TS*6}")
        scatter(CNT0, True)
        stamp()
        a.e(f"v_lshlrev_b32 v{T0+6}, 3, v0\nv_mov_b32 v{T0+4}, 0\nv_mov_b32 v{T0+5}, 0\nds_write_b64 v{T0+6}, v[{T0+4}:{T0+5}]")
        if opt.get("p1_eb", 1):
            a.e("s_waitcnt lgkmcnt(0)\ns_barrier")
            copyout()
        else:
            copyout()
            a.e("s_waitcnt lgkmcnt(0)\ns_barrier")
        stamp()
        for j in range(NQ):
            convert(j, CNT0, 2*(6-j) + NPI, False)
            if j == 0: stamp()
        stamp()
        prefix(CNT0, False)
        stamp()
        scatter(CNT0, False)
        stamp()
        a.e(f"s_add_u32 s{sTR}, s{sTR}, {TS*6}")
        copyout()
        stamp()
        if PR:
            a.e("s_waitcnt vmcnt(0)")
            stamp()
            a.e("s_waitcnt lgkmcnt(0)")
            sk = a.label("P1PR")
            a.e(f"s_and_b32 s58, s2, 63\ns_cmp_lg_u32 s58, 0\ns_cbranch_scc1 {sk}\ns_cmp_lg_u32 s{sWave}, {opt.get('p1pw', 0)}\ns_cbranch_scc1 {sk}")
            a.e("s_load_dwordx2 s[58:59], s[0:1], 96\ns_waitcnt lgkmcnt(0)")
            a.e("s_lshr_b32 s57, s2, 6\ns_lshl_b32 s57, s57, 6\nv_mov_b32 v12, s57")
            for k in range(nst[0]):
                a.e(f"s_sub_u32 s56, s{60+2*k}, s60\nv_mov_b32 v13, s56\nglobal_store_dword v12, v13, s[58:59] offset:{4*k}")
            a.e(f"{sk}:")
    else:
        set_tile(0)
        for j in range(NQ): issue_quad(j)
        for j in range(NQ): convert(j, CNT0, 3*(6-j))
        prefix(CNT0)
        a.e(f"s_mul_i32 s{sTR}, s{sTile}, {TS*6}")
        a.e(f"s_mov_b32 s46, s{sTR}")
        set_tile(NTILE//2)
        scatter(CNT0, True)
        a.e(f"s_mov_b32 s{sTR}, s46")
        C1 = CNT0 if S8 else CNT1
        if S8:
            a.e(f"v_lshlrev_b32 v{T0+6}, 3, v0\nv_mov_b32 v{T0+4}, 0\nv_mov_b32 v{T0+5}, 0\nds_write_b64 v{T0+6}, v[{T0+4}:{T0+5}]")
        copyout()
        if S8: a.e("s_waitcnt lgkmcnt(0)\ns_barrier")
        for j in range(NQ): convert(j, C1, 3*(6-j) + NPI)
        prefix(C1)
        scatter(C1, False)
        a.e(f"s_mul_i32 s{sTR}, s{sTile}, {TS*6}")
        copyout()
    if opt.get("rt2"):
        a.e("s_waitcnt vmcnt(0) lgkmcnt(0)\ns_memrealtime s[56:57]\ns_load_dwordx2 s[58:59], s[0:1], 104\ns_waitcnt lgkmcnt(0)")
        a.e(f"s_add_u32 s58, s58, {121<<20}\ns_addc_u32 s59, s59, 0\ns_lshl_b32 s60, s2, 8\ns_lshl_b32 s61, s{sWave}, 4\ns_add_u32 s60, s60, s61")
        a.e("v_mov_b32 v12, s60\nv_mov_b32 v16, s54\nv_mov_b32 v17, s55\nv_mov_b32 v18, s56\nv_mov_b32 v19, s57\nglobal_store_dwordx4 v12, v[16:19], s[58:59]")
    a.e("P1_END:\ns_endpgm")

def kd(name, vgpr, sgpr, accum):
    return f""".amdhsa_kernel {name}
  .amdhsa_next_free_vgpr {vgpr}
  .amdhsa_next_free_sgpr {sgpr}
  .amdhsa_accum_offset {accum}
  .amdhsa_group_segment_fixed_size 0
  .amdhsa_kernarg_size 112
  .amdhsa_user_sgpr_count 2
  .amdhsa_user_sgpr_kernarg_segment_ptr 1
  .amdhsa_system_sgpr_workgroup_id_x 1
  .amdhsa_float_denorm_mode_32 3
  .amdhsa_float_denorm_mode_16_64 3
.end_amdhsa_kernel
"""
```

```python
from common import *

CNT0, CNT1, WSUM, ABASE = 0, 4096, 8192, 8448
BBASE = ABASE + TS*4
P1_LDS = BBASE + TS*2
NQ = 7
LASTQ = TS//4 - 6*1024
NPI = 13
LASTP = TS//2 - 12*1024

def gen_p1(a, name, opt):
    S8 = opt.get('S', 8) == 8
    NBIN = 2048 if S8 else 1024
    MS = 85899 if S8 else M_S
    if opt.get('nsl'): MS = (opt['nsl'] << 32)//400000
    QB = 24
    O = lambda j: QB + 10*j
    I = lambda j: QB + 10*j + 4
    G = lambda j: QB + 10*j + 8
    RK = lambda j: 94 + 4*j
    T0 = 12
    S_IN, S_OUT, S_ANG, S_REC, S_OFF = 8, 12, 16, 20, 24
    sM1, sM2, sNeg, sB, sTile, sTI, sTA, sTR, sWave = 32, 33, 34, 35, 36, 37, 38, 39, 40
    sT0, sT1, sT2 = 41, 42, 43
    ntflag = " nt" if opt.get("p1_nt") else ""
    a.e(f".p2align 8\n.type {name},@function\n{name}:")
    a.e(f"s_cmp_ge_u32 s2, {NTILE//2}\ns_cbranch_scc1 P1_END")
    if opt.get("rt2"): a.e("s_memrealtime s[54:55]")
    a.e("s_load_dwordx4 s[4:7], s[0:1], 8")
    a.e("s_load_dwordx2 s[28:29], s[0:1], 32")
    a.e("s_load_dwordx2 s[30:31], s[0:1], 104")
    if opt.get("p1_wm"):
        a.e("s_load_dwordx2 s[74:75], s[0:1], 0")
        if opt.get("p1_wm", 0) >= 2:
            a.e("s_load_dwordx2 s[62:63], s[0:1], 24\ns_load_dwordx2 s[72:73], s[0:1], 40\ns_load_dwordx4 s[64:67], s[0:1], 56\ns_load_dwordx4 s[68:71], s[0:1], 72")
    a.e("v_lshlrev_b32 v1, 4, v0\nv_lshlrev_b32 v2, 3, v0")
    a.e("v_bfrev_b32 v11, 1")
    a.e(f"v_cmp_gt_u32 vcc, {LASTQ}, v0")
    a.e(f"s_mov_b32 s{sM1}, {M_B}\ns_mov_b32 s{sM2}, {MS}\ns_mov_b32 s{sNeg}, {-BS}\ns_mov_b32 s{sB}, {BBASE}")
    a.e("v_cndmask_b32 v3, v11, v1, vcc\nv_cndmask_b32 v4, v11, v2, vcc")
    a.e("v_mov_b32 v5, 1\nv_lshlrev_b32 v6, 2, v0\nv_mul_u32_u24 v7, 12, v0")
    a.e(f"v_cmp_gt_u32 vcc, {LASTP}, v0\nv_lshlrev_b32 v9, {11 if S8 else 10}, v0\ns_nop 0\nv_cndmask_b32 v8, v11, v7, vcc")
    a.e(f"v_cmp_eq_u32 vcc, 1023, v0\nv_mov_b32 v12, {NBIN*1024}\ns_nop 0\nv_cndmask_b32 v10, v11, v12, vcc")
    a.e(f"v_lshrrev_b32 v12, 6, v0\ns_nop 0\nv_readfirstlane_b32 s{sWave}, v12")
    a.e("v_mov_b32 v13, 0\nds_write_b32 v6, v13 offset:%d\nds_write_b32 v6, v13 offset:%d" % (CNT0, CNT1))
    a.e("s_waitcnt lgkmcnt(0)")
    srd(a, S_IN, 4, T*4); srd(a, S_OUT, 6, T*4); srd(a, S_ANG, 28, T*2); srd(a, S_REC, 30, NTILE*TS*6)
    a.e(f"s_add_u32 s30, s30, {OFFS_OFF}\ns_addc_u32 s31, s31, 0")
    srd(a, S_OFF, 30, (NBIN+1)*512*2)
    def warm():
        if not opt.get("p1_nom"):
            srd(a, 48, 74, E*32)
            a.e("s_mul_i32 s46, s2, 391\nv_add_u32 v126, s46, v0\nv_lshlrev_b32 v126, 7, v126")
            a.e("v_cmp_gt_u32 vcc, 391, v0\ns_and_saveexec_b64 s[54:55], vcc\nbuffer_load_dword v125, v126, s[48:51], 0 offen\ns_mov_b64 exec, s[54:55]")
        if opt.get("p1_wm", 0) >= 2:
            lw = a.label("P1WD")
            a.e(f"s_cmp_lg_u32 s{sWave}, 15\ns_cbranch_scc1 {lw}")
            srd(a, 48, 62, E*2)
            a.e("s_mul_i32 s46, s2, 25\nv_and_b32 v126, 63, v0\nv_add_u32 v126, s46, v126\nv_lshlrev_b32 v126, 7, v126")
            a.e("s_mov_b64 exec, 0x1ffffff\nbuffer_load_dword v125, v126, s[48:51], 0 offen\ns_mov_b64 exec, -1")
            a.e(f"{lw}:")
            lw = a.label("P1WW")
            a.e(f"s_cmp_lg_u32 s{sWave}, 14\ns_cbranch_scc1 {lw}\ns_cmp_ge_u32 s2, 8\ns_cbranch_scc1 {lw}")
            a.e("v_and_b32 v126, 63, v0\nv_lshlrev_b32 v126, 7, v126")
            for base, nb in ((72, 16), (64, 256), (66, 768), (68, 512), (70, 512)):
                srd(a, 48, base, nb)
                a.e("buffer_load_dword v125, v126, s[48:51], 0 offen")
            a.e(f"{lw}:")
    if opt.get("p1_wm") and not opt.get("p1_wl", 0): warm()
    a.e("s_barrier")

    def set_tile(expr_add):
        a.e(f"s_add_u32 s{sTile}, s2, {expr_add}")
        a.e(f"s_mul_i32 s{sTI}, s{sTile}, {TS*4}\ns_mul_i32 s{sTA}, s{sTile}, {TS*2}")
    V2 = opt.get("p1v", 1) == 2
    sNI, sNA = 47, 52
    def issue_quad(j):
        vo = "v1" if j < 6 else "v3"; va = "v2" if j < 6 else "v4"
        a.e(f"s_add_u32 s{sT0}, s{sTI}, {j*16384}\ns_add_u32 s{sT1}, s{sTA}, {j*8192}")
        a.e(f"buffer_load_dwordx4 {vr(O(j),4)}, {vo}, s[{S_OUT}:{S_OUT+3}], s{sT0} offen{ntflag}")
        a.e(f"buffer_load_dwordx4 {vr(I(j),4)}, {vo}, s[{S_IN}:{S_IN+3}], s{sT0} offen{ntflag}")
        a.e(f"buffer_load_dwordx2 {vr(G(j),2)}, {va}, s[{S_ANG}:{S_ANG+3}], s{sT1} offen{ntflag}")
    def issue_O(j):
        vo = "v1" if j < 6 else "v3"
        a.e(f"s_add_u32 s{sT0}, s{sNI}, {j*16384}")
        a.e(f"buffer_load_dwordx4 {vr(O(j),4)}, {vo}, s[{S_OUT}:{S_OUT+3}], s{sT0} offen{ntflag}")
    def issue_IG(j):
        vo = "v1" if j < 6 else "v3"; va = "v2" if j < 6 else "v4"
        a.e(f"s_add_u32 s{sT0}, s{sNI}, {j*16384}\ns_add_u32 s{sT1}, s{sNA}, {j*8192}")
        a.e(f"buffer_load_dwordx4 {vr(I(j),4)}, {vo}, s[{S_IN}:{S_IN+3}], s{sT0} offen{ntflag}")
        a.e(f"buffer_load_dwordx2 {vr(G(j),2)}, {va}, s[{S_ANG}:{S_ANG+3}], s{sT1} offen{ntflag}")
    def finalize(j, nxt):
        for k in range(4):
            a.e(f"v_lshl_or_b32 v{RK(j)+k}, v{O(j)+k}, 16, v{RK(j)+k}")
        if nxt: issue_O(j)

    def guard_last(begin):
        if begin:
            lab = a.label("P1_SKIPQ"); guard_last.lab = lab
            a.e(f"v_cmp_gt_u32 vcc, {LASTQ}, v0\ns_and_saveexec_b64 s[44:45], vcc\ns_cbranch_execz {lab}")
        else:
            a.e(f"{guard_last.lab}:\ns_mov_b64 exec, s[44:45]")

    def convert(j, cnt, younger, nxt=False):
        a.e(f"s_waitcnt vmcnt({younger})")
        if V2 and j >= 1:
            a.e("s_waitcnt lgkmcnt(0)")
            finalize(j-1, nxt)
        if j == 6: guard_last(True)
        t = T0
        for k in range(4):
            o, i = O(j)+k, I(j)+k
            a.e(f"v_mul_hi_u32_u24 v{t}, s{sM1}, v{o}")
            a.e(f"v_mul_hi_u32_u24 v{t+1}, s{sM2}, v{i}")
            a.e(f"v_mad_i32_i24 v{t+2}, v{t}, s{sNeg}, v{o}")
            a.e(f"v_lshl_add_u32 v{t+1}, v{t+1}, 8, v{t}")
            a.e(f"v_and_b32 v{t+3}, 15, v{t+2}")
            a.e(f"v_lshlrev_b32 v{o}, 2, v{t+1}")
            a.e(f"v_lshl_or_b32 v{t+3}, v{i}, 5, v{t+3}")
            a.e(f"v_lshrrev_b32 v{t+2}, 4, v{t+2}")
            a.e(f"ds_add_rtn_u32 v{RK(j)+k}, v{o}, v5 offset:{cnt}")
            a.e(f"v_lshl_or_b32 v{i}, v{t+2}, 24, v{t+3}")
        if j == 6: guard_last(False)

    def prefix(cnt, first=True):
        x, cc, y, w, c1 = T0, T0+1, T0+2, T0+3, T0+5
        p0, p1_ = T0+4, T0+5
        a.e("s_waitcnt lgkmcnt(0)")
        if V2: finalize(6, first)
        a.e("s_barrier")
        if S8:
            a.e(f"v_lshlrev_b32 v{T0+6}, 3, v0\nds_read_b64 v[{p0}:{p1_}], v{T0+6}")
        else:
            a.e(f"ds_read_b32 v{cc}, v6 offset:{cnt}")
        a.e(f"v_lshrrev_b32 v{w}, 4, v0\nv_and_b32 v{w}, 0xfc, v{w}")
        if S8:
            a.e(f"s_waitcnt lgkmcnt(0)\nv_add_u32 v{cc}, v{p0}, v{p1_}\nv_mov_b32 v{x}, v{cc}")
        else:
            a.e(f"s_waitcnt lgkmcnt(0)\nv_mov_b32 v{x}, v{cc}")
        for sh in (1, 2, 4, 8):
            a.e(f"s_nop 1\nv_add_u32_dpp v{x}, v{x}, v{x} row_shr:{sh} row_mask:0xf bank_mask:0xf")
        a.e(f"s_nop 1\nv_add_u32_dpp v{x}, v{x}, v{x} row_bcast:15 row_mask:0xa bank_mask:0xf")
        a.e(f"s_nop 1\nv_add_u32_dpp v{x}, v{x}, v{x} row_bcast:31 row_mask:0xc bank_mask:0xf")
        a.e(f"s_mov_b32 exec_lo, 0\ns_brev_b32 exec_hi, 1")
        a.e(f"ds_write_b32 v{w}, v{x} offset:{WSUM}")
        a.e("s_mov_b64 exec, -1")
        a.e("s_waitcnt lgkmcnt(0)\ns_barrier")
        a.e(f"v_and_b32 v{y}, 15, v0\nv_lshlrev_b32 v{y}, 2, v{y}\nds_read_b32 v{y}, v{y} offset:{WSUM}")
        a.e(f"s_waitcnt lgkmcnt(0)\nv_mov_b32 v{w}, v{y}")
        for sh in (1, 2, 4, 8):
            a.e(f"s_nop 1\nv_add_u32_dpp v{w}, v{w}, v{w} row_shr:{sh} row_mask:0xf bank_mask:0xf")
        a.e(f"v_sub_u32 v{w}, v{w}, v{y}\ns_nop 0\nv_readlane_b32 s{sT2}, v{w}, s{sWave}")
        a.e(f"v_sub_u32 v{y}, v{x}, v{cc}\ns_nop 1\nv_add_u32 v{y}, s{sT2}, v{y}")
        a.e(f"v_add_u32 v{x}, s{sT2}, v{x}")
        a.e(f"s_lshl_b32 s{sT0}, s{sTile}, 1")
        if S8:
            a.e(f"v_add_u32 v{p1_}, v{y}, v{p0}\nv_mov_b32 v{p0}, v{y}")
            a.e(f"ds_write_b64 v{T0+6}, v[{p0}:{p1_}]")
            v9 = "v11" if opt.get("p1_nooff") else "v9"
            if V2:
                if first:
                    a.e(f"v_mov_b32 v122, v{p0}\nv_mov_b32 v123, v{p1_}\nv_mov_b32 v124, v{x}")
                else:
                    a.e(f"s_lshl_b32 s53, s2, 2")
                    a.e(f"v_lshl_or_b32 v122, v{p0}, 16, v122\nv_lshl_or_b32 v123, v{p1_}, 16, v123\nv_lshl_or_b32 v124, v{x}, 16, v124")
                    if not opt.get("p1_late", 1):
                        a.e(f"buffer_store_dword v122, {v9}, s[{S_OFF}:{S_OFF+3}], s53 offen")
                        a.e(f"buffer_store_dword v123, {v9}, s[{S_OFF}:{S_OFF+3}], s53 offen offset:1024")
                        a.e(f"buffer_store_dword v124, v10, s[{S_OFF}:{S_OFF+3}], s53 offen")
            else:
                a.e(f"buffer_store_short v{p0}, {v9}, s[{S_OFF}:{S_OFF+3}], s{sT0} offen")
                a.e(f"buffer_store_short v{p1_}, {v9}, s[{S_OFF}:{S_OFF+3}], s{sT0} offen offset:1024")
        else:
            a.e(f"ds_write_b32 v6, v{y} offset:{cnt}")
            a.e(f"buffer_store_short v{y}, v9, s[{S_OFF}:{S_OFF+3}], s{sT0} offen")
        if not V2: a.e(f"buffer_store_short v{x}, v10, s[{S_OFF}:{S_OFF+3}], s{sT0} offen")
        a.e("s_waitcnt lgkmcnt(0)\ns_barrier")

    def scatter(cnt, next_loads):
        st = lambda j: T0 + 4*(j & 1)
        tmp = T0 + 8
        def reads(j):
            if j == 6: guard_last(True)
            for k in range(4):
                if V2:
                    a.e(f"v_lshrrev_b32 v{st(j)+k}, 16, v{RK(j)+k}")
            for k in range(4):
                if V2: a.e(f"ds_read_b32 v{st(j)+k}, v{st(j)+k} offset:{cnt}")
                else: a.e(f"ds_read_b32 v{st(j)+k}, v{O(j)+k} offset:{cnt}")
            if j == 6: guard_last(False)
        reads(0)
        for j in range(NQ):
            if j+1 < NQ:
                reads(j+1)
                a.e("s_waitcnt lgkmcnt(4)" if j+1 < 6 else "s_waitcnt lgkmcnt(0)")
            else:
                a.e("s_waitcnt lgkmcnt(0)")
            if j == 6: guard_last(True)
            for k in range(4):
                p = st(j)+k
                if V2: a.e(f"v_add_u32_sdwa v{p}, v{p}, v{RK(j)+k} dst_sel:DWORD dst_unused:UNUSED_PAD src0_sel:DWORD src1_sel:WORD_0")
                else: a.e(f"v_add_u32 v{p}, v{p}, v{RK(j)+k}")
                g = G(j) + (k >> 1)
                if opt.get("p1_aos", 1):
                    a.e(f"v_and_b32 v{tmp+2}, 1, v{p}\nv_mul_u32_u24 v{p}, 6, v{p}")
                    a.e(f"v_mad_i32_i24 v{tmp}, v{tmp+2}, -2, v{p}\nv_mad_i32_i24 v{tmp+1}, v{tmp+2}, -4, v{p}")
                    a.e(f"ds_write_b32 v{tmp}, v{I(j)+k} offset:{ABASE}")
                    a.e(f"ds_write_b16{'_d16_hi' if (k & 1) else ''} v{tmp+1}, v{g} offset:{ABASE+8}")
                else:
                    a.e(f"v_lshlrev_b32 v{tmp}, 2, v{p}")
                    a.e(f"v_lshl_add_u32 v{tmp+1}, v{p}, 1, s{sB}")
                    a.e(f"ds_write_b32 v{tmp}, v{I(j)+k} offset:{ABASE}")
                    a.e(f"ds_write_b16{'_d16_hi' if (k & 1) else ''} v{tmp+1}, v{g}")
            if j == 6: guard_last(False)
            if next_loads:
                if V2: issue_IG(j)
                else: issue_quad(j)
            elif V2 and opt.get("p1_late", 1):
                v9 = "v11" if opt.get("p1_nooff") else "v9"
                if j == 0: a.e(f"buffer_store_dword v122, {v9}, s[{S_OFF}:{S_OFF+3}], s53 offen")
                if j == 1 and opt.get("p1_wm") and opt.get("p1_wl", 0): warm()
                if j == 3: a.e(f"buffer_store_dword v123, {v9}, s[{S_OFF}:{S_OFF+3}], s53 offen offset:1024")
                if j == 5: a.e(f"buffer_store_dword v124, v10, s[{S_OFF}:{S_OFF+3}], s53 offen")
        a.e("s_waitcnt lgkmcnt(0)\ns_barrier")

    NCH = (TS*6//16 + 1023)//1024
    LASTC = TS*6//16 - (NCH-1)*1024
    def copyout_aos():
        tr = lambda q: 94 + 4*q
        av = T0
        a.e(f"v_add_u32 v{av}, {ABASE}, v1")
        a.e(f"v_cmp_gt_u32 vcc, {LASTC}, v0\nv_mov_b32 v8, v11\ns_nop 0\nv_cndmask_b32 v8, v8, v1, vcc")
        it = 0
        while it < NCH:
            n = min(5, NCH-it)
            for q in range(n):
                i2 = it+q
                if i2*16384 > 65535-16:
                    a.e(f"v_add_u32 v{av+1}, {i2*16384}, v{av}")
                    a.e(f"ds_read_b128 {vr(tr(q),4)}, v{av+1}")
                else:
                    a.e(f"ds_read_b128 {vr(tr(q),4)}, v{av} offset:{i2*16384}")
            for q in range(n):
                i2 = it+q
                a.e(f"s_waitcnt lgkmcnt({n-1-q})")
                a.e(f"s_add_u32 s{sT0}, s{sTR}, {i2*16384}")
                vo = "v1" if i2 < NCH-1 else "v8"
                if opt.get("p1_nost"): vo = "v11"
                a.e(f"buffer_store_dwordx4 {vr(tr(q),4)}, {vo}, s[{S_REC}:{S_REC+3}], s{sT0} offen")
            it += n
            if it < NCH: a.e("s_nop 1")
    def copyout():
        if opt.get("p1_aos", 1): return copyout_aos()
        tr = lambda q: 94 + 4*q
        av, bv = T0, T0+1
        a.e(f"v_lshlrev_b32 v{av}, 3, v0\nv_add_u32 v{av}, {ABASE}, v{av}")
        a.e(f"v_add_u32 v{bv}, s{sB}, v6")
        it = 0
        while it < NPI:
            n = min(7, NPI-it)
            for q in range(n):
                i2 = it+q
                if i2*8192 > 65535-8:
                    a.e(f"v_add_u32 v{T0+2}, {i2*8192}, v{av}")
                    a.e(f"ds_read_b64 {vr(tr(q),2)}, v{T0+2}")
                else:
                    a.e(f"ds_read_b64 {vr(tr(q),2)}, v{av} offset:{i2*8192}")
                a.e(f"ds_read_b32 v{tr(q)+2}, v{bv} offset:{i2*4096}")
            for q in range(n):
                i2 = it+q
                a.e(f"s_waitcnt lgkmcnt({2*(n-1-q)})")
                a.e(f"s_add_u32 s{sT0}, s{sTR}, {i2*12288}")
                vo = "v7" if i2 < NPI-1 else "v8"
                if opt.get("p1_nost"): vo = "v11"
                a.e(f"buffer_store_dwordx3 {vr(tr(q),3)}, {vo}, s[{S_REC}:{S_REC+3}], s{sT0} offen" + ["", " nt", " sc1", " sc0 sc1", " sc0", " sc1 nt"][opt.get("p1_st", 0)])
            it += n
            if it < NPI:
                a.e("s_nop 1")
    if V2:
        PR = opt.get("p1prof")
        nst = [0]
        def stamp():
            if not PR: return
            k = nst[0]; nst[0] += 1
            a.e(f"s_memtime s[{60+2*k}:{61+2*k}]")
        stamp()
        a.e(f"s_lshl_b32 s{sTile}, s2, 1")
        a.e(f"s_mul_i32 s{sTI}, s{sTile}, {TS*4}\ns_mul_i32 s{sTA}, s{sTile}, {TS*2}")
        a.e(f"s_add_u32 s{sNI}, s{sTI}, {TS*4}\ns_add_u32 s{sNA}, s{sTA}, {TS*2}")
        for j in range(NQ): issue_quad(j)
        stamp()
        for j in range(NQ):
            convert(j, CNT0, 3*(6-j) + max(j-1, 0), True)
            if j == 0: stamp()
        stamp()
        prefix(CNT0, True)
        stamp()
        a.e(f"s_mul_i32 s{sTR}, s{sTile}, {TS*6}")
        scatter(CNT0, True)
        stamp()
        a.e(f"v_lshlrev_b32 v{T0+6}, 3, v0\nv_mov_b32 v{T0+4}, 0\nv_mov_b32 v{T0+5}, 0\nds_write_b64 v{T0+6}, v[{T0+4}:{T0+5}]")
        if opt.get("p1_eb", 1):
            a.e("s_waitcnt lgkmcnt(0)\ns_barrier")
            copyout()
        else:
            copyout()
            a.e("s_waitcnt lgkmcnt(0)\ns_barrier")
        stamp()
        for j in range(NQ):
            convert(j, CNT0, 2*(6-j) + (NCH if opt.get("p1_aos", 1) else NPI), False)
            if j == 0: stamp()
        stamp()
        prefix(CNT0, False)
        stamp()
        scatter(CNT0, False)
        stamp()
        a.e(f"s_add_u32 s{sTR}, s{sTR}, {TS*6}")
        copyout()
        stamp()
        if PR:
            a.e("s_waitcnt vmcnt(0)")
            stamp()
            a.e("s_waitcnt lgkmcnt(0)")
            sk = a.label("P1PR")
            a.e(f"s_and_b32 s58, s2, 63\ns_cmp_lg_u32 s58, 0\ns_cbranch_scc1 {sk}\ns_cmp_lg_u32 s{sWave}, {opt.get('p1pw', 0)}\ns_cbranch_scc1 {sk}")
            a.e("s_load_dwordx2 s[58:59], s[0:1], 96\ns_waitcnt lgkmcnt(0)")
            a.e("s_lshr_b32 s57, s2, 6\ns_lshl_b32 s57, s57, 6\nv_mov_b32 v12, s57")
            for k in range(nst[0]):
                a.e(f"s_sub_u32 s56, s{60+2*k}, s60\nv_mov_b32 v13, s56\nglobal_store_dword v12, v13, s[58:59] offset:{4*k}")
            a.e(f"{sk}:")
    else:
        set_tile(0)
        for j in range(NQ): issue_quad(j)
        for j in range(NQ): convert(j, CNT0, 3*(6-j))
        prefix(CNT0)
        a.e(f"s_mul_i32 s{sTR}, s{sTile}, {TS*6}")
        a.e(f"s_mov_b32 s46, s{sTR}")
        set_tile(NTILE//2)
        scatter(CNT0, True)
        a.e(f"s_mov_b32 s{sTR}, s46")
        C1 = CNT0 if S8 else CNT1
        if S8:
            a.e(f"v_lshlrev_b32 v{T0+6}, 3, v0\nv_mov_b32 v{T0+4}, 0\nv_mov_b32 v{T0+5}, 0\nds_write_b64 v{T0+6}, v[{T0+4}:{T0+5}]")
        copyout()
        if S8: a.e("s_waitcnt lgkmcnt(0)\ns_barrier")
        for j in range(NQ): convert(j, C1, 3*(6-j) + NPI)
        prefix(C1)
        scatter(C1, False)
        a.e(f"s_mul_i32 s{sTR}, s{sTile}, {TS*6}")
        copyout()
    if opt.get("rt2"):
        a.e("s_waitcnt vmcnt(0) lgkmcnt(0)\ns_memrealtime s[56:57]\ns_load_dwordx2 s[58:59], s[0:1], 104\ns_waitcnt lgkmcnt(0)")
        a.e(f"s_add_u32 s58, s58, {121<<20}\ns_addc_u32 s59, s59, 0\ns_lshl_b32 s60, s2, 8\ns_lshl_b32 s61, s{sWave}, 4\ns_add_u32 s60, s60, s61")
        a.e("v_mov_b32 v12, s60\nv_mov_b32 v16, s54\nv_mov_b32 v17, s55\nv_mov_b32 v18, s56\nv_mov_b32 v19, s57\nglobal_store_dwordx4 v12, v[16:19], s[58:59]")
    a.e("P1_END:\ns_endpgm")

def kd(name, vgpr, sgpr, accum):
    return f""".amdhsa_kernel {name}
  .amdhsa_next_free_vgpr {vgpr}
  .amdhsa_next_free_sgpr {sgpr}
  .amdhsa_accum_offset {accum}
  .amdhsa_group_segment_fixed_size 0
  .amdhsa_kernarg_size 112
  .amdhsa_user_sgpr_count 2
  .amdhsa_user_sgpr_kernarg_segment_ptr 1
  .amdhsa_system_sgpr_workgroup_id_x 1
  .amdhsa_float_denorm_mode_32 3
  .amdhsa_float_denorm_mode_16_64 3
.end_amdhsa_kernel
"""
```

```python
from common import *

CNT0, CNT1, WSUM, ABASE = 0, 4096, 8192, 8448
BBASE = ABASE + TS*4
P1_LDS = BBASE + TS*2
NQ = 7
LASTQ = TS//4 - 6*1024
NPI = 13
LASTP = TS//2 - 12*1024

def gen_p1(a, name, opt):
    S8 = opt.get('S', 8) == 8
    NBIN = 2048 if S8 else 1024
    MS = 85899 if S8 else M_S
    if opt.get('nsl'): MS = (opt['nsl'] << 32)//400000
    QB = 24
    O = lambda j: QB + 10*j
    I = lambda j: QB + 10*j + 4
    G = lambda j: QB + 10*j + 8
    RK = lambda j: 94 + 4*j
    T0 = 12
    S_IN, S_OUT, S_ANG, S_REC, S_OFF = 8, 12, 16, 20, 24
    sM1, sM2, sNeg, sB, sTile, sTI, sTA, sTR, sWave = 32, 33, 34, 35, 36, 37, 38, 39, 40
    sT0, sT1, sT2 = 41, 42, 43
    ntflag = " nt" if opt.get("p1_nt") else ""
    a.e(f".p2align 8\n.type {name},@function\n{name}:")
    a.e(f"s_cmp_ge_u32 s2, {NTILE//2}\ns_cbranch_scc1 P1_END")
    if opt.get("rt2"): a.e("s_memrealtime s[54:55]")
    a.e("s_load_dwordx4 s[4:7], s[0:1], 8")
    a.e("s_load_dwordx2 s[28:29], s[0:1], 32")
    a.e("s_load_dwordx2 s[30:31], s[0:1], 104")
    if opt.get("p1_wm"):
        a.e("s_load_dwordx2 s[74:75], s[0:1], 0")
        if opt.get("p1_wm", 0) >= 2:
            a.e("s_load_dwordx2 s[62:63], s[0:1], 24\ns_load_dwordx2 s[72:73], s[0:1], 40\ns_load_dwordx4 s[64:67], s[0:1], 56\ns_load_dwordx4 s[68:71], s[0:1], 72")
    a.e("v_lshlrev_b32 v1, 4, v0\nv_lshlrev_b32 v2, 3, v0")
    a.e("v_bfrev_b32 v11, 1")
    a.e(f"v_cmp_gt_u32 vcc, {LASTQ}, v0")
    a.e(f"s_mov_b32 s{sM1}, {M_B}\ns_mov_b32 s{sM2}, {MS}\ns_mov_b32 s{sNeg}, {-BS}\ns_mov_b32 s{sB}, {BBASE}")
    a.e("v_cndmask_b32 v3, v11, v1, vcc\nv_cndmask_b32 v4, v11, v2, vcc")
    a.e("v_mov_b32 v5, 1\nv_lshlrev_b32 v6, 2, v0\nv_mul_u32_u24 v7, 12, v0")
    a.e(f"v_cmp_gt_u32 vcc, {LASTP}, v0\nv_lshlrev_b32 v9, {11 if S8 else 10}, v0\ns_nop 0\nv_cndmask_b32 v8, v11, v7, vcc")
    a.e(f"v_cmp_eq_u32 vcc, 1023, v0\nv_mov_b32 v12, {NBIN*1024}\ns_nop 0\nv_cndmask_b32 v10, v11, v12, vcc")
    a.e(f"v_lshrrev_b32 v12, 6, v0\ns_nop 0\nv_readfirstlane_b32 s{sWave}, v12")
    a.e("v_mov_b32 v13, 0\nds_write_b32 v6, v13 offset:%d\nds_write_b32 v6, v13 offset:%d" % (CNT0, CNT1))
    a.e("s_waitcnt lgkmcnt(0)")
    srd(a, S_IN, 4, T*4); srd(a, S_OUT, 6, T*4); srd(a, S_ANG, 28, T*2); srd(a, S_REC, 30, NTILE*TS*6)
    a.e(f"s_add_u32 s30, s30, {OFFS_OFF}\ns_addc_u32 s31, s31, 0")
    srd(a, S_OFF, 30, (NBIN+1)*512*2)
    def warm():
        if not opt.get("p1_nom"):
            srd(a, 48, 74, E*32)
            a.e("s_mul_i32 s46, s2, 391\nv_add_u32 v126, s46, v0\nv_lshlrev_b32 v126, 7, v126")
            a.e("v_cmp_gt_u32 vcc, 391, v0\ns_and_saveexec_b64 s[54:55], vcc\nbuffer_load_dword v125, v126, s[48:51], 0 offen\ns_mov_b64 exec, s[54:55]")
        if opt.get("p1_wm", 0) >= 2:
            lw = a.label("P1WD")
            a.e(f"s_cmp_lg_u32 s{sWave}, 15\ns_cbranch_scc1 {lw}")
            srd(a, 48, 62, E*2)
            a.e("s_mul_i32 s46, s2, 25\nv_and_b32 v126, 63, v0\nv_add_u32 v126, s46, v126\nv_lshlrev_b32 v126, 7, v126")
            a.e("s_mov_b64 exec, 0x1ffffff\nbuffer_load_dword v125, v126, s[48:51], 0 offen\ns_mov_b64 exec, -1")
            a.e(f"{lw}:")
            lw = a.label("P1WW")
            a.e(f"s_cmp_lg_u32 s{sWave}, 14\ns_cbranch_scc1 {lw}\ns_cmp_ge_u32 s2, 8\ns_cbranch_scc1 {lw}")
            a.e("v_and_b32 v126, 63, v0\nv_lshlrev_b32 v126, 7, v126")
            for base, nb in ((72, 16), (64, 256), (66, 768), (68, 512), (70, 512)):
                srd(a, 48, base, nb)
                a.e("buffer_load_dword v125, v126, s[48:51], 0 offen")
            a.e(f"{lw}:")
    if opt.get("p1_wm") and not opt.get("p1_wl", 0): warm()
    a.e("s_barrier")

    def set_tile(expr_add):
        a.e(f"s_add_u32 s{sTile}, s2, {expr_add}")
        a.e(f"s_mul_i32 s{sTI}, s{sTile}, {TS*4}\ns_mul_i32 s{sTA}, s{sTile}, {TS*2}")
    V2 = opt.get("p1v", 1) == 2
    sNI, sNA = 47, 52
    def issue_quad(j):
        vo = "v1" if j < 6 else "v3"; va = "v2" if j < 6 else "v4"
        a.e(f"s_add_u32 s{sT0}, s{sTI}, {j*16384}\ns_add_u32 s{sT1}, s{sTA}, {j*8192}")
        a.e(f"buffer_load_dwordx4 {vr(O(j),4)}, {vo}, s[{S_OUT}:{S_OUT+3}], s{sT0} offen{ntflag}")
        a.e(f"buffer_load_dwordx4 {vr(I(j),4)}, {vo}, s[{S_IN}:{S_IN+3}], s{sT0} offen{ntflag}")
        a.e(f"buffer_load_dwordx2 {vr(G(j),2)}, {va}, s[{S_ANG}:{S_ANG+3}], s{sT1} offen{ntflag}")
    def issue_O(j):
        vo = "v1" if j < 6 else "v3"
        a.e(f"s_add_u32 s{sT0}, s{sNI}, {j*16384}")
        a.e(f"buffer_load_dwordx4 {vr(O(j),4)}, {vo}, s[{S_OUT}:{S_OUT+3}], s{sT0} offen{ntflag}")
    def issue_IG(j):
        vo = "v1" if j < 6 else "v3"; va = "v2" if j < 6 else "v4"
        a.e(f"s_add_u32 s{sT0}, s{sNI}, {j*16384}\ns_add_u32 s{sT1}, s{sNA}, {j*8192}")
        a.e(f"buffer_load_dwordx4 {vr(I(j),4)}, {vo}, s[{S_IN}:{S_IN+3}], s{sT0} offen{ntflag}")
        a.e(f"buffer_load_dwordx2 {vr(G(j),2)}, {va}, s[{S_ANG}:{S_ANG+3}], s{sT1} offen{ntflag}")
    def finalize(j, nxt):
        for k in range(4):
            a.e(f"v_lshl_or_b32 v{RK(j)+k}, v{O(j)+k}, 16, v{RK(j)+k}")
        if nxt: issue_O(j)

    def guard_last(begin):
        if begin:
            lab = a.label("P1_SKIPQ"); guard_last.lab = lab
            a.e(f"v_cmp_gt_u32 vcc, {LASTQ}, v0\ns_and_saveexec_b64 s[44:45], vcc\ns_cbranch_execz {lab}")
        else:
            a.e(f"{guard_last.lab}:\ns_mov_b64 exec, s[44:45]")

    def convert(j, cnt, younger, nxt=False):
        a.e(f"s_waitcnt vmcnt({younger})")
        if V2 and j >= 1:
            a.e("s_waitcnt lgkmcnt(0)")
            finalize(j-1, nxt)
        if j == 6: guard_last(True)
        t = T0
        for k in range(4):
            o, i = O(j)+k, I(j)+k
            a.e(f"v_mul_hi_u32_u24 v{t}, s{sM1}, v{o}")
            a.e(f"v_mul_hi_u32_u24 v{t+1}, s{sM2}, v{i}")
            a.e(f"v_mad_i32_i24 v{t+2}, v{t}, s{sNeg}, v{o}")
            a.e(f"v_lshl_add_u32 v{t+1}, v{t+1}, 8, v{t}")
            a.e(f"v_and_b32 v{t+3}, 15, v{t+2}")
            a.e(f"v_lshlrev_b32 v{o}, 2, v{t+1}")
            a.e(f"v_lshl_or_b32 v{t+3}, v{i}, 5, v{t+3}")
            a.e(f"v_lshrrev_b32 v{t+2}, 4, v{t+2}")
            a.e(f"ds_add_rtn_u32 v{RK(j)+k}, v{o}, v5 offset:{cnt}")
            a.e(f"v_lshl_or_b32 v{i}, v{t+2}, 24, v{t+3}")
        if j == 6: guard_last(False)

    def prefix(cnt, first=True):
        x, cc, y, w, c1 = T0, T0+1, T0+2, T0+3, T0+5
        p0, p1_ = T0+4, T0+5
        a.e("s_waitcnt lgkmcnt(0)")
        if V2: finalize(6, first)
        a.e("s_barrier")
        if S8:
            a.e(f"v_lshlrev_b32 v{T0+6}, 3, v0\nds_read_b64 v[{p0}:{p1_}], v{T0+6}")
        else:
            a.e(f"ds_read_b32 v{cc}, v6 offset:{cnt}")
        a.e(f"v_lshrrev_b32 v{w}, 4, v0\nv_and_b32 v{w}, 0xfc, v{w}")
        if S8:
            a.e(f"s_waitcnt lgkmcnt(0)\nv_add_u32 v{cc}, v{p0}, v{p1_}\nv_mov_b32 v{x}, v{cc}")
        else:
            a.e(f"s_waitcnt lgkmcnt(0)\nv_mov_b32 v{x}, v{cc}")
        for sh in (1, 2, 4, 8):
            a.e(f"s_nop 1\nv_add_u32_dpp v{x}, v{x}, v{x} row_shr:{sh} row_mask:0xf bank_mask:0xf")
        a.e(f"s_nop 1\nv_add_u32_dpp v{x}, v{x}, v{x} row_bcast:15 row_mask:0xa bank_mask:0xf")
        a.e(f"s_nop 1\nv_add_u32_dpp v{x}, v{x}, v{x} row_bcast:31 row_mask:0xc bank_mask:0xf")
        a.e(f"s_mov_b32 exec_lo, 0\ns_brev_b32 exec_hi, 1")
        a.e(f"ds_write_b32 v{w}, v{x} offset:{WSUM}")
        a.e("s_mov_b64 exec, -1")
        a.e("s_waitcnt lgkmcnt(0)\ns_barrier")
        a.e(f"v_and_b32 v{y}, 15, v0\nv_lshlrev_b32 v{y}, 2, v{y}\nds_read_b32 v{y}, v{y} offset:{WSUM}")
        a.e(f"s_waitcnt lgkmcnt(0)\nv_mov_b32 v{w}, v{y}")
        for sh in (1, 2, 4, 8):
            a.e(f"s_nop 1\nv_add_u32_dpp v{w}, v{w}, v{w} row_shr:{sh} row_mask:0xf bank_mask:0xf")
        a.e(f"v_sub_u32 v{w}, v{w}, v{y}\ns_nop 0\nv_readlane_b32 s{sT2}, v{w}, s{sWave}")
        a.e(f"v_sub_u32 v{y}, v{x}, v{cc}\ns_nop 1\nv_add_u32 v{y}, s{sT2}, v{y}")
        a.e(f"v_add_u32 v{x}, s{sT2}, v{x}")
        a.e(f"s_lshl_b32 s{sT0}, s{sTile}, 1")
        if S8:
            a.e(f"v_add_u32 v{p1_}, v{y}, v{p0}\nv_mov_b32 v{p0}, v{y}")
            a.e(f"ds_write_b64 v{T0+6}, v[{p0}:{p1_}]")
            v9 = "v11" if opt.get("p1_nooff") else "v9"
            if V2:
                if first:
                    a.e(f"v_mov_b32 v122, v{p0}\nv_mov_b32 v123, v{p1_}\nv_mov_b32 v124, v{x}")
                else:
                    a.e(f"s_lshl_b32 s53, s2, 2")
                    a.e(f"v_lshl_or_b32 v122, v{p0}, 16, v122\nv_lshl_or_b32 v123, v{p1_}, 16, v123\nv_lshl_or_b32 v124, v{x}, 16, v124")
                    if not opt.get("p1_late", 1):
                        a.e(f"buffer_store_dword v122, {v9}, s[{S_OFF}:{S_OFF+3}], s53 offen")
                        a.e(f"buffer_store_dword v123, {v9}, s[{S_OFF}:{S_OFF+3}], s53 offen offset:1024")
                        a.e(f"buffer_store_dword v124, v10, s[{S_OFF}:{S_OFF+3}], s53 offen")
            else:
                a.e(f"buffer_store_short v{p0}, {v9}, s[{S_OFF}:{S_OFF+3}], s{sT0} offen")
                a.e(f"buffer_store_short v{p1_}, {v9}, s[{S_OFF}:{S_OFF+3}], s{sT0} offen offset:1024")
        else:
            a.e(f"ds_write_b32 v6, v{y} offset:{cnt}")
            a.e(f"buffer_store_short v{y}, v9, s[{S_OFF}:{S_OFF+3}], s{sT0} offen")
        if not V2: a.e(f"buffer_store_short v{x}, v10, s[{S_OFF}:{S_OFF+3}], s{sT0} offen")
        a.e("s_waitcnt lgkmcnt(0)\ns_barrier")

    def scatter(cnt, next_loads):
        st = lambda j: T0 + 4*(j & 1)
        tmp = T0 + 8
        def reads(j):
            if j == 6: guard_last(True)
            for k in range(4):
                if V2:
                    a.e(f"v_lshrrev_b32 v{st(j)+k}, 16, v{RK(j)+k}")
            for k in range(4):
                if V2: a.e(f"ds_read_b32 v{st(j)+k}, v{st(j)+k} offset:{cnt}")
                else: a.e(f"ds_read_b32 v{st(j)+k}, v{O(j)+k} offset:{cnt}")
            if j == 6: guard_last(False)
        reads(0)
        for j in range(NQ):
            if j+1 < NQ:
                reads(j+1)
                a.e("s_waitcnt lgkmcnt(4)" if j+1 < 6 else "s_waitcnt lgkmcnt(0)")
            else:
                a.e("s_waitcnt lgkmcnt(0)")
            if j == 6: guard_last(True)
            for k in range(4):
                p = st(j)+k
                if V2: a.e(f"v_add_u32_sdwa v{p}, v{p}, v{RK(j)+k} dst_sel:DWORD dst_unused:UNUSED_PAD src0_sel:DWORD src1_sel:WORD_0")
                else: a.e(f"v_add_u32 v{p}, v{p}, v{RK(j)+k}")
                g = G(j) + (k >> 1)
                if opt.get("p1_aos", 1):
                    a.e(f"v_and_b32 v{tmp+2}, 1, v{p}\nv_mul_u32_u24 v{p}, 6, v{p}")
                    a.e(f"v_mad_i32_i24 v{tmp}, v{tmp+2}, -2, v{p}\nv_mad_i32_i24 v{tmp+1}, v{tmp+2}, -4, v{p}")
                    a.e(f"ds_write_b32 v{tmp}, v{I(j)+k} offset:{ABASE}")
                    a.e(f"ds_write_b16{'_d16_hi' if (k & 1) else ''} v{tmp+1}, v{g} offset:{ABASE+8}")
                else:
                    a.e(f"v_lshlrev_b32 v{tmp}, 2, v{p}")
                    a.e(f"v_lshl_add_u32 v{tmp+1}, v{p}, 1, s{sB}")
                    a.e(f"ds_write_b32 v{tmp}, v{I(j)+k} offset:{ABASE}")
                    a.e(f"ds_write_b16{'_d16_hi' if (k & 1) else ''} v{tmp+1}, v{g}")
            if j == 6: guard_last(False)
            if next_loads:
                if V2: issue_IG(j)
                else: issue_quad(j)
            elif V2 and opt.get("p1_late", 1):
                v9 = "v11" if opt.get("p1_nooff") else "v9"
                if j == 0: a.e(f"buffer_store_dword v122, {v9}, s[{S_OFF}:{S_OFF+3}], s53 offen")
                if j == 1 and opt.get("p1_wm") and opt.get("p1_wl", 0): warm()
                if j == 3: a.e(f"buffer_store_dword v123, {v9}, s[{S_OFF}:{S_OFF+3}], s53 offen offset:1024")
                if j == 5: a.e(f"buffer_store_dword v124, v10, s[{S_OFF}:{S_OFF+3}], s53 offen")
        a.e("s_waitcnt lgkmcnt(0)\ns_barrier")

    NCH = (TS*6//16 + 1023)//1024
    LASTC = TS*6//16 - (NCH-1)*1024
    def copyout_aos(final=False):
        if final: regs = [24 + 4*q for q in range(NCH)]
        else: regs = [94 + 4*q for q in range(7)] + [16, 20, 12]
        av, at = 125, 126
        a.e(f"v_add_u32 v{av}, {ABASE}, v1")
        a.e(f"v_cmp_gt_u32 vcc, {LASTC}, v0\nv_mov_b32 v8, v11\ns_nop 0\nv_cndmask_b32 v8, v8, v1, vcc")
        it = 0
        G1 = opt.get("p1_cg", 5)
        while it < NCH:
            n = min(G1, NCH-it)
            for q in range(n):
                i2 = it+q
                if i2*16384 > 65535-16:
                    a.e(f"v_add_u32 v{at}, {i2*16384}, v{av}")
                    a.e(f"ds_read_b128 {vr(regs[i2],4)}, v{at}")
                else:
                    a.e(f"ds_read_b128 {vr(regs[i2],4)}, v{av} offset:{i2*16384}")
            for q in range(n):
                i2 = it+q
                a.e(f"s_waitcnt lgkmcnt({n-1-q})")
                a.e(f"s_add_u32 s{sT0}, s{sTR}, {i2*16384}")
                vo = "v1" if i2 < NCH-1 else "v8"
                if opt.get("p1_nost"): vo = "v11"
                a.e(f"buffer_store_dwordx4 {vr(regs[i2],4)}, {vo}, s[{S_REC}:{S_REC+3}], s{sT0} offen")
            it += n
        a.e("s_nop 3")
    def copyout(final=False):
        if opt.get("p1_aos", 1): return copyout_aos(final)
        tr = lambda q: 94 + 4*q
        av, bv = T0, T0+1
        a.e(f"v_lshlrev_b32 v{av}, 3, v0\nv_add_u32 v{av}, {ABASE}, v{av}")
        a.e(f"v_add_u32 v{bv}, s{sB}, v6")
        it = 0
        while it < NPI:
            n = min(7, NPI-it)
            for q in range(n):
                i2 = it+q
                if i2*8192 > 65535-8:
                    a.e(f"v_add_u32 v{T0+2}, {i2*8192}, v{av}")
                    a.e(f"ds_read_b64 {vr(tr(q),2)}, v{T0+2}")
                else:
                    a.e(f"ds_read_b64 {vr(tr(q),2)}, v{av} offset:{i2*8192}")
                a.e(f"ds_read_b32 v{tr(q)+2}, v{bv} offset:{i2*4096}")
            for q in range(n):
                i2 = it+q
                a.e(f"s_waitcnt lgkmcnt({2*(n-1-q)})")
                a.e(f"s_add_u32 s{sT0}, s{sTR}, {i2*12288}")
                vo = "v7" if i2 < NPI-1 else "v8"
                if opt.get("p1_nost"): vo = "v11"
                a.e(f"buffer_store_dwordx3 {vr(tr(q),3)}, {vo}, s[{S_REC}:{S_REC+3}], s{sT0} offen" + ["", " nt", " sc1", " sc0 sc1", " sc0", " sc1 nt"][opt.get("p1_st", 0)])
            it += n
            if it < NPI:
                a.e("s_nop 1")
    if V2:
        PR = opt.get("p1prof")
        nst = [0]
        def stamp():
            if not PR: return
            k = nst[0]; nst[0] += 1
            a.e(f"s_memtime s[{60+2*k}:{61+2*k}]")
        stamp()
        a.e(f"s_lshl_b32 s{sTile}, s2, 1")
        a.e(f"s_mul_i32 s{sTI}, s{sTile}, {TS*4}\ns_mul_i32 s{sTA}, s{sTile}, {TS*2}")
        a.e(f"s_add_u32 s{sNI}, s{sTI}, {TS*4}\ns_add_u32 s{sNA}, s{sTA}, {TS*2}")
        for j in range(NQ): issue_quad(j)
        stamp()
        for j in range(NQ):
            convert(j, CNT0, 3*(6-j) + max(j-1, 0), True)
            if j == 0: stamp()
        stamp()
        prefix(CNT0, True)
        stamp()
        a.e(f"s_mul_i32 s{sTR}, s{sTile}, {TS*6}")
        scatter(CNT0, True)
        stamp()
        a.e(f"v_lshlrev_b32 v{T0+6}, 3, v0\nv_mov_b32 v{T0+4}, 0\nv_mov_b32 v{T0+5}, 0\nds_write_b64 v{T0+6}, v[{T0+4}:{T0+5}]")
        if opt.get("p1_eb", 1):
            a.e("s_waitcnt lgkmcnt(0)\ns_barrier")
            copyout()
        else:
            copyout()
            a.e("s_waitcnt lgkmcnt(0)\ns_barrier")
        stamp()
        for j in range(NQ):
            convert(j, CNT0, 2*(6-j) + (NCH if opt.get("p1_aos", 1) else NPI), False)
            if j == 0: stamp()
        stamp()
        prefix(CNT0, False)
        stamp()
        scatter(CNT0, False)
        stamp()
        a.e(f"s_add_u32 s{sTR}, s{sTR}, {TS*6}")
        copyout(True)
        stamp()
        if PR:
            a.e("s_waitcnt vmcnt(0)")
            stamp()
            a.e("s_waitcnt lgkmcnt(0)")
            sk = a.label("P1PR")
            a.e(f"s_and_b32 s58, s2, 63\ns_cmp_lg_u32 s58, 0\ns_cbranch_scc1 {sk}\ns_cmp_lg_u32 s{sWave}, {opt.get('p1pw', 0)}\ns_cbranch_scc1 {sk}")
            a.e("s_load_dwordx2 s[58:59], s[0:1], 96\ns_waitcnt lgkmcnt(0)")
            a.e("s_lshr_b32 s57, s2, 6\ns_lshl_b32 s57, s57, 6\nv_mov_b32 v12, s57")
            for k in range(nst[0]):
                a.e(f"s_sub_u32 s56, s{60+2*k}, s60\nv_mov_b32 v13, s56\nglobal_store_dword v12, v13, s[58:59] offset:{4*k}")
            a.e(f"{sk}:")
    else:
        set_tile(0)
        for j in range(NQ): issue_quad(j)
        for j in range(NQ): convert(j, CNT0, 3*(6-j))
        prefix(CNT0)
        a.e(f"s_mul_i32 s{sTR}, s{sTile}, {TS*6}")
        a.e(f"s_mov_b32 s46, s{sTR}")
        set_tile(NTILE//2)
        scatter(CNT0, True)
        a.e(f"s_mov_b32 s{sTR}, s46")
        C1 = CNT0 if S8 else CNT1
        if S8:
            a.e(f"v_lshlrev_b32 v{T0+6}, 3, v0\nv_mov_b32 v{T0+4}, 0\nv_mov_b32 v{T0+5}, 0\nds_write_b64 v{T0+6}, v[{T0+4}:{T0+5}]")
        copyout()
        if S8: a.e("s_waitcnt lgkmcnt(0)\ns_barrier")
        for j in range(NQ): convert(j, C1, 3*(6-j) + NPI)
        prefix(C1)
        scatter(C1, False)
        a.e(f"s_mul_i32 s{sTR}, s{sTile}, {TS*6}")
        copyout()
    if opt.get("rt2"):
        a.e("s_waitcnt vmcnt(0) lgkmcnt(0)\ns_memrealtime s[56:57]\ns_load_dwordx2 s[58:59], s[0:1], 104\ns_waitcnt lgkmcnt(0)")
        a.e(f"s_add_u32 s58, s58, {121<<20}\ns_addc_u32 s59, s59, 0\ns_lshl_b32 s60, s2, 8\ns_lshl_b32 s61, s{sWave}, 4\ns_add_u32 s60, s60, s61")
        a.e("v_mov_b32 v12, s60\nv_mov_b32 v16, s54\nv_mov_b32 v17, s55\nv_mov_b32 v18, s56\nv_mov_b32 v19, s57\nglobal_store_dwordx4 v12, v[16:19], s[58:59]")
    a.e("P1_END:\ns_endpgm")

def kd(name, vgpr, sgpr, accum):
    return f""".amdhsa_kernel {name}
  .amdhsa_next_free_vgpr {vgpr}
  .amdhsa_next_free_sgpr {sgpr}
  .amdhsa_accum_offset {accum}
  .amdhsa_group_segment_fixed_size 0
  .amdhsa_kernarg_size 112
  .amdhsa_user_sgpr_count 2
  .amdhsa_user_sgpr_kernarg_segment_ptr 1
  .amdhsa_system_sgpr_workgroup_id_x 1
  .amdhsa_float_denorm_mode_32 3
  .amdhsa_float_denorm_mode_16_64 3
.end_amdhsa_kernel
"""
```

```python
from common import *

CNT0, CNT1, WSUM, ABASE = 0, 4096, 8192, 8448
BBASE = ABASE + TS*4
P1_LDS = BBASE + TS*2
NQ = 7
LASTQ = TS//4 - 6*1024
NPI = 13
LASTP = TS//2 - 12*1024

def gen_p1(a, name, opt):
    S8 = opt.get('S', 8) == 8
    NBIN = 2048 if S8 else 1024
    MS = 85899 if S8 else M_S
    if opt.get('nsl'): MS = (opt['nsl'] << 32)//400000
    QB = 24
    O = lambda j: QB + 10*j
    I = lambda j: QB + 10*j + 4
    G = lambda j: QB + 10*j + 8
    RK = lambda j: 94 + 4*j
    T0 = 12
    S_IN, S_OUT, S_ANG, S_REC, S_OFF = 8, 12, 16, 20, 24
    sM1, sM2, sNeg, sB, sTile, sTI, sTA, sTR, sWave = 32, 33, 34, 35, 36, 37, 38, 39, 40
    sT0, sT1, sT2 = 41, 42, 43
    ntflag = " nt" if opt.get("p1_nt") else ""
    a.e(f".p2align 8\n.type {name},@function\n{name}:")
    a.e(f"s_cmp_ge_u32 s2, {NTILE//2}\ns_cbranch_scc1 P1_END")
    if opt.get("rt2"): a.e("s_memrealtime s[54:55]")
    a.e("s_load_dwordx4 s[4:7], s[0:1], 8")
    a.e("s_load_dwordx2 s[28:29], s[0:1], 32")
    a.e("s_load_dwordx2 s[30:31], s[0:1], 104")
    if opt.get("p1_wm"):
        a.e("s_load_dwordx2 s[74:75], s[0:1], 0")
        if opt.get("p1_wm", 0) >= 2:
            a.e("s_load_dwordx2 s[62:63], s[0:1], 24\ns_load_dwordx2 s[72:73], s[0:1], 40\ns_load_dwordx4 s[64:67], s[0:1], 56\ns_load_dwordx4 s[68:71], s[0:1], 72")
    a.e("v_lshlrev_b32 v1, 4, v0\nv_lshlrev_b32 v2, 3, v0")
    a.e("v_bfrev_b32 v11, 1")
    a.e(f"v_cmp_gt_u32 vcc, {LASTQ}, v0")
    a.e(f"s_mov_b32 s{sM1}, {M_B}\ns_mov_b32 s{sM2}, {MS}\ns_mov_b32 s{sNeg}, {-BS}\ns_mov_b32 s{sB}, {BBASE}")
    a.e("v_cndmask_b32 v3, v11, v1, vcc\nv_cndmask_b32 v4, v11, v2, vcc")
    a.e("v_mov_b32 v5, 1\nv_lshlrev_b32 v6, 2, v0\nv_mul_u32_u24 v7, 12, v0")
    a.e(f"v_cmp_gt_u32 vcc, {LASTP}, v0\nv_lshlrev_b32 v9, {11 if S8 else 10}, v0\ns_nop 0\nv_cndmask_b32 v8, v11, v7, vcc")
    a.e(f"v_cmp_eq_u32 vcc, 1023, v0\nv_mov_b32 v12, {NBIN*1024}\ns_nop 0\nv_cndmask_b32 v10, v11, v12, vcc")
    a.e(f"v_lshrrev_b32 v12, 6, v0\ns_nop 0\nv_readfirstlane_b32 s{sWave}, v12")
    a.e("v_mov_b32 v13, 0\nds_write_b32 v6, v13 offset:%d\nds_write_b32 v6, v13 offset:%d" % (CNT0, CNT1))
    a.e("s_waitcnt lgkmcnt(0)")
    srd(a, S_IN, 4, T*4); srd(a, S_OUT, 6, T*4); srd(a, S_ANG, 28, T*2); srd(a, S_REC, 30, NTILE*TS*6)
    a.e(f"s_add_u32 s30, s30, {OFFS_OFF}\ns_addc_u32 s31, s31, 0")
    srd(a, S_OFF, 30, (NBIN+1)*512*2)
    def warm():
        if not opt.get("p1_nom"):
            srd(a, 48, 74, E*32)
            a.e("s_mul_i32 s46, s2, 391\nv_add_u32 v126, s46, v0\nv_lshlrev_b32 v126, 7, v126")
            a.e("v_cmp_gt_u32 vcc, 391, v0\ns_and_saveexec_b64 s[54:55], vcc\nbuffer_load_dword v125, v126, s[48:51], 0 offen\ns_mov_b64 exec, s[54:55]")
        if opt.get("p1_wm", 0) >= 2:
            lw = a.label("P1WD")
            a.e(f"s_cmp_lg_u32 s{sWave}, 15\ns_cbranch_scc1 {lw}")
            srd(a, 48, 62, E*2)
            a.e("s_mul_i32 s46, s2, 25\nv_and_b32 v126, 63, v0\nv_add_u32 v126, s46, v126\nv_lshlrev_b32 v126, 7, v126")
            a.e("s_mov_b64 exec, 0x1ffffff\nbuffer_load_dword v125, v126, s[48:51], 0 offen\ns_mov_b64 exec, -1")
            a.e(f"{lw}:")
            lw = a.label("P1WW")
            a.e(f"s_cmp_lg_u32 s{sWave}, 14\ns_cbranch_scc1 {lw}\ns_cmp_ge_u32 s2, 8\ns_cbranch_scc1 {lw}")
            a.e("v_and_b32 v126, 63, v0\nv_lshlrev_b32 v126, 7, v126")
            for base, nb in ((72, 16), (64, 256), (66, 768), (68, 512), (70, 512)):
                srd(a, 48, base, nb)
                a.e("buffer_load_dword v125, v126, s[48:51], 0 offen")
            a.e(f"{lw}:")
    if opt.get("p1_wm") and not opt.get("p1_wl", 0): warm()
    a.e("s_barrier")

    def set_tile(expr_add):
        a.e(f"s_add_u32 s{sTile}, s2, {expr_add}")
        a.e(f"s_mul_i32 s{sTI}, s{sTile}, {TS*4}\ns_mul_i32 s{sTA}, s{sTile}, {TS*2}")
    V2 = opt.get("p1v", 1) == 2
    sNI, sNA = 47, 52
    def issue_quad(j):
        vo = "v1" if j < 6 else "v3"; va = "v2" if j < 6 else "v4"
        a.e(f"s_add_u32 s{sT0}, s{sTI}, {j*16384}\ns_add_u32 s{sT1}, s{sTA}, {j*8192}")
        a.e(f"buffer_load_dwordx4 {vr(O(j),4)}, {vo}, s[{S_OUT}:{S_OUT+3}], s{sT0} offen{ntflag}")
        a.e(f"buffer_load_dwordx4 {vr(I(j),4)}, {vo}, s[{S_IN}:{S_IN+3}], s{sT0} offen{ntflag}")
        a.e(f"buffer_load_dwordx2 {vr(G(j),2)}, {va}, s[{S_ANG}:{S_ANG+3}], s{sT1} offen{ntflag}")
    def issue_O(j):
        vo = "v1" if j < 6 else "v3"
        a.e(f"s_add_u32 s{sT0}, s{sNI}, {j*16384}")
        a.e(f"buffer_load_dwordx4 {vr(O(j),4)}, {vo}, s[{S_OUT}:{S_OUT+3}], s{sT0} offen{ntflag}")
    def issue_IG(j):
        vo = "v1" if j < 6 else "v3"; va = "v2" if j < 6 else "v4"
        a.e(f"s_add_u32 s{sT0}, s{sNI}, {j*16384}\ns_add_u32 s{sT1}, s{sNA}, {j*8192}")
        a.e(f"buffer_load_dwordx4 {vr(I(j),4)}, {vo}, s[{S_IN}:{S_IN+3}], s{sT0} offen{ntflag}")
        a.e(f"buffer_load_dwordx2 {vr(G(j),2)}, {va}, s[{S_ANG}:{S_ANG+3}], s{sT1} offen{ntflag}")
    def finalize(j, nxt):
        for k in range(4):
            a.e(f"v_lshl_or_b32 v{RK(j)+k}, v{O(j)+k}, 16, v{RK(j)+k}")
        if nxt: issue_O(j)

    def guard_last(begin):
        if begin:
            lab = a.label("P1_SKIPQ"); guard_last.lab = lab
            a.e(f"v_cmp_gt_u32 vcc, {LASTQ}, v0\ns_and_saveexec_b64 s[44:45], vcc\ns_cbranch_execz {lab}")
        else:
            a.e(f"{guard_last.lab}:\ns_mov_b64 exec, s[44:45]")

    def convert(j, cnt, younger, nxt=False):
        a.e(f"s_waitcnt vmcnt({younger})")
        if V2 and j >= 1:
            a.e("s_waitcnt lgkmcnt(0)")
            finalize(j-1, nxt)
        if j == 6: guard_last(True)
        t = T0
        for k in range(4):
            o, i = O(j)+k, I(j)+k
            a.e(f"v_mul_hi_u32_u24 v{t}, s{sM1}, v{o}")
            a.e(f"v_mul_hi_u32_u24 v{t+1}, s{sM2}, v{i}")
            a.e(f"v_mad_i32_i24 v{t+2}, v{t}, s{sNeg}, v{o}")
            a.e(f"v_lshl_add_u32 v{t+1}, v{t+1}, 8, v{t}")
            a.e(f"v_and_b32 v{t+3}, 15, v{t+2}")
            a.e(f"v_lshlrev_b32 v{o}, 2, v{t+1}")
            a.e(f"v_lshl_or_b32 v{t+3}, v{i}, 5, v{t+3}")
            a.e(f"v_lshrrev_b32 v{t+2}, 4, v{t+2}")
            a.e(f"ds_add_rtn_u32 v{RK(j)+k}, v{o}, v5 offset:{cnt}")
            a.e(f"v_lshl_or_b32 v{i}, v{t+2}, 24, v{t+3}")
        if j == 6: guard_last(False)

    def prefix(cnt, first=True):
        x, cc, y, w, c1 = T0, T0+1, T0+2, T0+3, T0+5
        p0, p1_ = T0+4, T0+5
        a.e("s_waitcnt lgkmcnt(0)")
        if V2: finalize(6, first)
        a.e("s_barrier")
        if S8:
            a.e(f"v_lshlrev_b32 v{T0+6}, 3, v0\nds_read_b64 v[{p0}:{p1_}], v{T0+6}")
        else:
            a.e(f"ds_read_b32 v{cc}, v6 offset:{cnt}")
        a.e(f"v_lshrrev_b32 v{w}, 4, v0\nv_and_b32 v{w}, 0xfc, v{w}")
        if S8:
            a.e(f"s_waitcnt lgkmcnt(0)\nv_add_u32 v{cc}, v{p0}, v{p1_}\nv_mov_b32 v{x}, v{cc}")
        else:
            a.e(f"s_waitcnt lgkmcnt(0)\nv_mov_b32 v{x}, v{cc}")
        for sh in (1, 2, 4, 8):
            a.e(f"s_nop 1\nv_add_u32_dpp v{x}, v{x}, v{x} row_shr:{sh} row_mask:0xf bank_mask:0xf")
        a.e(f"s_nop 1\nv_add_u32_dpp v{x}, v{x}, v{x} row_bcast:15 row_mask:0xa bank_mask:0xf")
        a.e(f"s_nop 1\nv_add_u32_dpp v{x}, v{x}, v{x} row_bcast:31 row_mask:0xc bank_mask:0xf")
        a.e(f"s_mov_b32 exec_lo, 0\ns_brev_b32 exec_hi, 1")
        a.e(f"ds_write_b32 v{w}, v{x} offset:{WSUM}")
        a.e("s_mov_b64 exec, -1")
        a.e("s_waitcnt lgkmcnt(0)\ns_barrier")
        a.e(f"v_and_b32 v{y}, 15, v0\nv_lshlrev_b32 v{y}, 2, v{y}\nds_read_b32 v{y}, v{y} offset:{WSUM}")
        a.e(f"s_waitcnt lgkmcnt(0)\nv_mov_b32 v{w}, v{y}")
        for sh in (1, 2, 4, 8):
            a.e(f"s_nop 1\nv_add_u32_dpp v{w}, v{w}, v{w} row_shr:{sh} row_mask:0xf bank_mask:0xf")
        a.e(f"v_sub_u32 v{w}, v{w}, v{y}\ns_nop 0\nv_readlane_b32 s{sT2}, v{w}, s{sWave}")
        a.e(f"v_sub_u32 v{y}, v{x}, v{cc}\ns_nop 1\nv_add_u32 v{y}, s{sT2}, v{y}")
        a.e(f"v_add_u32 v{x}, s{sT2}, v{x}")
        a.e(f"s_lshl_b32 s{sT0}, s{sTile}, 1")
        if S8:
            a.e(f"v_add_u32 v{p1_}, v{y}, v{p0}\nv_mov_b32 v{p0}, v{y}")
            a.e(f"ds_write_b64 v{T0+6}, v[{p0}:{p1_}]")
            v9 = "v11" if opt.get("p1_nooff") else "v9"
            if V2:
                if first:
                    a.e(f"v_mov_b32 v122, v{p0}\nv_mov_b32 v123, v{p1_}\nv_mov_b32 v124, v{x}")
                else:
                    a.e(f"s_lshl_b32 s53, s2, 2")
                    a.e(f"v_lshl_or_b32 v122, v{p0}, 16, v122\nv_lshl_or_b32 v123, v{p1_}, 16, v123\nv_lshl_or_b32 v124, v{x}, 16, v124")
                    if not opt.get("p1_late", 1):
                        a.e(f"buffer_store_dword v122, {v9}, s[{S_OFF}:{S_OFF+3}], s53 offen")
                        a.e(f"buffer_store_dword v123, {v9}, s[{S_OFF}:{S_OFF+3}], s53 offen offset:1024")
                        a.e(f"buffer_store_dword v124, v10, s[{S_OFF}:{S_OFF+3}], s53 offen")
            else:
                a.e(f"buffer_store_short v{p0}, {v9}, s[{S_OFF}:{S_OFF+3}], s{sT0} offen")
                a.e(f"buffer_store_short v{p1_}, {v9}, s[{S_OFF}:{S_OFF+3}], s{sT0} offen offset:1024")
        else:
            a.e(f"ds_write_b32 v6, v{y} offset:{cnt}")
            a.e(f"buffer_store_short v{y}, v9, s[{S_OFF}:{S_OFF+3}], s{sT0} offen")
        if not V2: a.e(f"buffer_store_short v{x}, v10, s[{S_OFF}:{S_OFF+3}], s{sT0} offen")
        a.e("s_waitcnt lgkmcnt(0)\ns_barrier")

    def scatter(cnt, next_loads):
        st = lambda j: T0 + 4*(j & 1)
        tmp = T0 + 8
        def reads(j):
            if j == 6: guard_last(True)
            for k in range(4):
                if V2:
                    a.e(f"v_lshrrev_b32 v{st(j)+k}, 16, v{RK(j)+k}")
            for k in range(4):
                if V2: a.e(f"ds_read_b32 v{st(j)+k}, v{st(j)+k} offset:{cnt}")
                else: a.e(f"ds_read_b32 v{st(j)+k}, v{O(j)+k} offset:{cnt}")
            if j == 6: guard_last(False)
        reads(0)
        for j in range(NQ):
            if j+1 < NQ:
                reads(j+1)
                a.e("s_waitcnt lgkmcnt(4)" if j+1 < 6 else "s_waitcnt lgkmcnt(0)")
            else:
                a.e("s_waitcnt lgkmcnt(0)")
            if j == 6: guard_last(True)
            for k in range(4):
                p = st(j)+k
                if V2: a.e(f"v_add_u32_sdwa v{p}, v{p}, v{RK(j)+k} dst_sel:DWORD dst_unused:UNUSED_PAD src0_sel:DWORD src1_sel:WORD_0")
                else: a.e(f"v_add_u32 v{p}, v{p}, v{RK(j)+k}")
                g = G(j) + (k >> 1)
                if opt.get("p1_aos", 0):
                    a.e(f"v_and_b32 v{tmp+2}, 1, v{p}\nv_mul_u32_u24 v{p}, 6, v{p}")
                    a.e(f"v_mad_i32_i24 v{tmp}, v{tmp+2}, -2, v{p}\nv_mad_i32_i24 v{tmp+1}, v{tmp+2}, -4, v{p}")
                    a.e(f"ds_write_b32 v{tmp}, v{I(j)+k} offset:{ABASE}")
                    a.e(f"ds_write_b16{'_d16_hi' if (k & 1) else ''} v{tmp+1}, v{g} offset:{ABASE+8}")
                else:
                    a.e(f"v_lshlrev_b32 v{tmp}, 2, v{p}")
                    a.e(f"v_lshl_add_u32 v{tmp+1}, v{p}, 1, s{sB}")
                    a.e(f"ds_write_b32 v{tmp}, v{I(j)+k} offset:{ABASE}")
                    a.e(f"ds_write_b16{'_d16_hi' if (k & 1) else ''} v{tmp+1}, v{g}")
            if j == 6: guard_last(False)
            if next_loads:
                if V2: issue_IG(j)
                else: issue_quad(j)
            elif V2 and opt.get("p1_late", 1):
                v9 = "v11" if opt.get("p1_nooff") else "v9"
                if j == 0: a.e(f"buffer_store_dword v122, {v9}, s[{S_OFF}:{S_OFF+3}], s53 offen")
                if j == 1 and opt.get("p1_wm") and opt.get("p1_wl", 0): warm()
                if j == 3: a.e(f"buffer_store_dword v123, {v9}, s[{S_OFF}:{S_OFF+3}], s53 offen offset:1024")
                if j == 5: a.e(f"buffer_store_dword v124, v10, s[{S_OFF}:{S_OFF+3}], s53 offen")
        a.e("s_waitcnt lgkmcnt(0)\ns_barrier")

    NCH = (TS*6//16 + 1023)//1024
    LASTC = TS*6//16 - (NCH-1)*1024
    def copyout_aos(final=False):
        if final: regs = [24 + 4*q for q in range(NCH)]
        else: regs = [94 + 4*q for q in range(7)] + [16, 20, 12]
        av, at = 125, 126
        a.e(f"v_add_u32 v{av}, {ABASE}, v1\nv_add_u32 v126, {ABASE+65536}, v1\nv_add_u32 v127, {ABASE+131072}, v1")
        a.e(f"v_cmp_gt_u32 vcc, {LASTC}, v0\nv_mov_b32 v8, v11\ns_nop 0\nv_cndmask_b32 v8, v8, v1, vcc")
        it = 0
        G1 = opt.get("p1_cg", 5)
        while it < NCH:
            n = min(G1, NCH-it)
            for q in range(n):
                i2 = it+q
                base = [125, 126, 127][i2 // 4]
                a.e(f"ds_read_b128 {vr(regs[i2],4)}, v{base} offset:{(i2 % 4)*16384}")
            for q in range(n):
                i2 = it+q
                a.e(f"s_waitcnt lgkmcnt({n-1-q})")
                a.e(f"s_add_u32 s{sT0}, s{sTR}, {i2*16384}")
                vo = "v1" if i2 < NCH-1 else "v8"
                if opt.get("p1_nost"): vo = "v11"
                a.e(f"buffer_store_dwordx4 {vr(regs[i2],4)}, {vo}, s[{S_REC}:{S_REC+3}], s{sT0} offen")
            it += n
        a.e("s_nop 3")
    def copyout(final=False):
        if opt.get("p1_aos", 0): return copyout_aos(final)
        tr = lambda q: 94 + 4*q
        av, bv = T0, T0+1
        a.e(f"v_lshlrev_b32 v{av}, 3, v0\nv_add_u32 v{av}, {ABASE}, v{av}")
        a.e(f"v_add_u32 v{bv}, s{sB}, v6")
        it = 0
        while it < NPI:
            n = min(7, NPI-it)
            for q in range(n):
                i2 = it+q
                if i2*8192 > 65535-8:
                    a.e(f"v_add_u32 v{T0+2}, {i2*8192}, v{av}")
                    a.e(f"ds_read_b64 {vr(tr(q),2)}, v{T0+2}")
                else:
                    a.e(f"ds_read_b64 {vr(tr(q),2)}, v{av} offset:{i2*8192}")
                a.e(f"ds_read_b32 v{tr(q)+2}, v{bv} offset:{i2*4096}")
            for q in range(n):
                i2 = it+q
                a.e(f"s_waitcnt lgkmcnt({2*(n-1-q)})")
                a.e(f"s_add_u32 s{sT0}, s{sTR}, {i2*12288}")
                vo = "v7" if i2 < NPI-1 else "v8"
                if opt.get("p1_nost"): vo = "v11"
                a.e(f"buffer_store_dwordx3 {vr(tr(q),3)}, {vo}, s[{S_REC}:{S_REC+3}], s{sT0} offen" + ["", " nt", " sc1", " sc0 sc1", " sc0", " sc1 nt"][opt.get("p1_st", 0)])
            it += n
            if it < NPI:
                a.e("s_nop 1")
    if V2:
        PR = opt.get("p1prof")
        nst = [0]
        def stamp():
            if not PR: return
            k = nst[0]; nst[0] += 1
            a.e(f"s_memtime s[{60+2*k}:{61+2*k}]")
        stamp()
        a.e(f"s_lshl_b32 s{sTile}, s2, 1")
        a.e(f"s_mul_i32 s{sTI}, s{sTile}, {TS*4}\ns_mul_i32 s{sTA}, s{sTile}, {TS*2}")
        a.e(f"s_add_u32 s{sNI}, s{sTI}, {TS*4}\ns_add_u32 s{sNA}, s{sTA}, {TS*2}")
        for j in range(NQ): issue_quad(j)
        stamp()
        for j in range(NQ):
            convert(j, CNT0, 3*(6-j) + max(j-1, 0), True)
            if j == 0: stamp()
        stamp()
        prefix(CNT0, True)
        stamp()
        a.e(f"s_mul_i32 s{sTR}, s{sTile}, {TS*6}")
        scatter(CNT0, True)
        stamp()
        a.e(f"v_lshlrev_b32 v{T0+6}, 3, v0\nv_mov_b32 v{T0+4}, 0\nv_mov_b32 v{T0+5}, 0\nds_write_b64 v{T0+6}, v[{T0+4}:{T0+5}]")
        if opt.get("p1_eb", 1):
            a.e("s_waitcnt lgkmcnt(0)\ns_barrier")
            copyout()
        else:
            copyout()
            a.e("s_waitcnt lgkmcnt(0)\ns_barrier")
        stamp()
        for j in range(NQ):
            convert(j, CNT0, 2*(6-j) + (0 if opt.get("p1_safe", 1) else (NCH if opt.get("p1_aos", 0) else NPI) - 1), False)
            if j == 0: stamp()
        stamp()
        prefix(CNT0, False)
        stamp()
        scatter(CNT0, False)
        stamp()
        a.e(f"s_add_u32 s{sTR}, s{sTR}, {TS*6}")
        copyout(True)
        stamp()
        if PR:
            a.e("s_waitcnt vmcnt(0)")
            stamp()
            a.e("s_waitcnt lgkmcnt(0)")
            sk = a.label("P1PR")
            a.e(f"s_and_b32 s58, s2, 63\ns_cmp_lg_u32 s58, 0\ns_cbranch_scc1 {sk}\ns_cmp_lg_u32 s{sWave}, {opt.get('p1pw', 0)}\ns_cbranch_scc1 {sk}")
            a.e("s_load_dwordx2 s[58:59], s[0:1], 96\ns_waitcnt lgkmcnt(0)")
            a.e("s_lshr_b32 s57, s2, 6\ns_lshl_b32 s57, s57, 6\nv_mov_b32 v12, s57")
            for k in range(nst[0]):
                a.e(f"s_sub_u32 s56, s{60+2*k}, s60\nv_mov_b32 v13, s56\nglobal_store_dword v12, v13, s[58:59] offset:{4*k}")
            a.e(f"{sk}:")
    else:
        set_tile(0)
        for j in range(NQ): issue_quad(j)
        for j in range(NQ): convert(j, CNT0, 3*(6-j))
        prefix(CNT0)
        a.e(f"s_mul_i32 s{sTR}, s{sTile}, {TS*6}")
        a.e(f"s_mov_b32 s46, s{sTR}")
        set_tile(NTILE//2)
        scatter(CNT0, True)
        a.e(f"s_mov_b32 s{sTR}, s46")
        C1 = CNT0 if S8 else CNT1
        if S8:
            a.e(f"v_lshlrev_b32 v{T0+6}, 3, v0\nv_mov_b32 v{T0+4}, 0\nv_mov_b32 v{T0+5}, 0\nds_write_b64 v{T0+6}, v[{T0+4}:{T0+5}]")
        copyout()
        if S8: a.e("s_waitcnt lgkmcnt(0)\ns_barrier")
        for j in range(NQ): convert(j, C1, 3*(6-j) + NPI)
        prefix(C1)
        scatter(C1, False)
        a.e(f"s_mul_i32 s{sTR}, s{sTile}, {TS*6}")
        copyout()
    if opt.get("rt2"):
        a.e("s_waitcnt vmcnt(0) lgkmcnt(0)\ns_memrealtime s[56:57]\ns_load_dwordx2 s[58:59], s[0:1], 104\ns_waitcnt lgkmcnt(0)")
        a.e(f"s_add_u32 s58, s58, {121<<20}\ns_addc_u32 s59, s59, 0\ns_lshl_b32 s60, s2, 8\ns_lshl_b32 s61, s{sWave}, 4\ns_add_u32 s60, s60, s61")
        a.e("v_mov_b32 v12, s60\nv_mov_b32 v16, s54\nv_mov_b32 v17, s55\nv_mov_b32 v18, s56\nv_mov_b32 v19, s57\nglobal_store_dwordx4 v12, v[16:19], s[58:59]")
    a.e("P1_END:\ns_endpgm")

def kd(name, vgpr, sgpr, accum):
    return f""".amdhsa_kernel {name}
  .amdhsa_next_free_vgpr {vgpr}
  .amdhsa_next_free_sgpr {sgpr}
  .amdhsa_accum_offset {accum}
  .amdhsa_group_segment_fixed_size 0
  .amdhsa_kernarg_size 112
  .amdhsa_user_sgpr_count 2
  .amdhsa_user_sgpr_kernarg_segment_ptr 1
  .amdhsa_system_sgpr_workgroup_id_x 1
  .amdhsa_float_denorm_mode_32 3
  .amdhsa_float_denorm_mode_16_64 3
.end_amdhsa_kernel
"""
```

```python
from common import *

CNT0, CNT1, WSUM, ABASE = 0, 4096, 8192, 8448
BBASE = ABASE + TS*4
P1_LDS = BBASE + TS*2
NQ = 7
LASTQ = TS//4 - 6*1024
NPI = 13
LASTP = TS//2 - 12*1024

def gen_p1(a, name, opt):
    S8 = opt.get('S', 8) == 8
    NBIN = 2048 if S8 else 1024
    MS = 85899 if S8 else M_S
    if opt.get('nsl'): MS = (opt['nsl'] << 32)//400000
    QB = 24
    O = lambda j: QB + 10*j
    I = lambda j: QB + 10*j + 4
    G = lambda j: QB + 10*j + 8
    RK = lambda j: 94 + 4*j
    T0 = 12
    S_IN, S_OUT, S_ANG, S_REC, S_OFF = 8, 12, 16, 20, 24
    sM1, sM2, sNeg, sB, sTile, sTI, sTA, sTR, sWave = 32, 33, 34, 35, 36, 37, 38, 39, 40
    sT0, sT1, sT2 = 41, 42, 43
    ntflag = ["", " nt", " sc1 nt", " sc0 sc1 nt", " sc0 nt"][opt.get("p1_nt", 0)]
    oflag = ["", " nt", " sc1", " sc0 sc1"][opt.get("p1_of", 0)]
    a.e(f".p2align 8\n.type {name},@function\n{name}:")
    a.e(f"s_cmp_ge_u32 s2, {NTILE//2}\ns_cbranch_scc1 P1_END")
    if opt.get("rt2"): a.e("s_memrealtime s[54:55]")
    a.e("s_load_dwordx4 s[4:7], s[0:1], 8")
    a.e("s_load_dwordx2 s[28:29], s[0:1], 32")
    a.e("s_load_dwordx2 s[30:31], s[0:1], 104")
    if opt.get("p1_wm"):
        a.e("s_load_dwordx2 s[74:75], s[0:1], 0")
        if opt.get("p1_wm", 0) >= 2:
            a.e("s_load_dwordx2 s[62:63], s[0:1], 24\ns_load_dwordx2 s[72:73], s[0:1], 40\ns_load_dwordx4 s[64:67], s[0:1], 56\ns_load_dwordx4 s[68:71], s[0:1], 72")
    a.e("v_lshlrev_b32 v1, 4, v0\nv_lshlrev_b32 v2, 3, v0")
    a.e("v_bfrev_b32 v11, 1")
    a.e(f"v_cmp_gt_u32 vcc, {LASTQ}, v0")
    a.e(f"s_mov_b32 s{sM1}, {M_B}\ns_mov_b32 s{sM2}, {MS}\ns_mov_b32 s{sNeg}, {-BS}\ns_mov_b32 s{sB}, {BBASE}")
    a.e("v_cndmask_b32 v3, v11, v1, vcc\nv_cndmask_b32 v4, v11, v2, vcc")
    a.e("v_mov_b32 v5, 1\nv_lshlrev_b32 v6, 2, v0\nv_mul_u32_u24 v7, 12, v0")
    a.e(f"v_cmp_gt_u32 vcc, {LASTP}, v0\nv_lshlrev_b32 v9, {11 if S8 else 10}, v0\ns_nop 0\nv_cndmask_b32 v8, v11, v7, vcc")
    a.e(f"v_cmp_eq_u32 vcc, 1023, v0\nv_mov_b32 v12, {NBIN*1024}\ns_nop 0\nv_cndmask_b32 v10, v11, v12, vcc")
    a.e(f"v_lshrrev_b32 v12, 6, v0\ns_nop 0\nv_readfirstlane_b32 s{sWave}, v12")
    a.e("v_mov_b32 v13, 0\nds_write_b32 v6, v13 offset:%d\nds_write_b32 v6, v13 offset:%d" % (CNT0, CNT1))
    a.e("s_waitcnt lgkmcnt(0)")
    srd(a, S_IN, 4, T*4); srd(a, S_OUT, 6, T*4); srd(a, S_ANG, 28, T*2); srd(a, S_REC, 30, NTILE*TS*6)
    a.e(f"s_add_u32 s30, s30, {OFFS_OFF}\ns_addc_u32 s31, s31, 0")
    srd(a, S_OFF, 30, (NBIN+1)*512*2)
    def warm():
        if not opt.get("p1_nom"):
            srd(a, 48, 74, E*32)
            a.e("s_mul_i32 s46, s2, 391\nv_add_u32 v126, s46, v0\nv_lshlrev_b32 v126, 7, v126")
            a.e("v_cmp_gt_u32 vcc, 391, v0\ns_and_saveexec_b64 s[54:55], vcc\nbuffer_load_dword v125, v126, s[48:51], 0 offen\ns_mov_b64 exec, s[54:55]")
        if opt.get("p1_wm", 0) >= 2:
            lw = a.label("P1WD")
            a.e(f"s_cmp_lg_u32 s{sWave}, 15\ns_cbranch_scc1 {lw}")
            srd(a, 48, 62, E*2)
            a.e("s_mul_i32 s46, s2, 25\nv_and_b32 v126, 63, v0\nv_add_u32 v126, s46, v126\nv_lshlrev_b32 v126, 7, v126")
            a.e("s_mov_b64 exec, 0x1ffffff\nbuffer_load_dword v125, v126, s[48:51], 0 offen\ns_mov_b64 exec, -1")
            a.e(f"{lw}:")
            lw = a.label("P1WW")
            a.e(f"s_cmp_lg_u32 s{sWave}, 14\ns_cbranch_scc1 {lw}\ns_cmp_ge_u32 s2, 8\ns_cbranch_scc1 {lw}")
            a.e("v_and_b32 v126, 63, v0\nv_lshlrev_b32 v126, 7, v126")
            for base, nb in ((72, 16), (64, 256), (66, 768), (68, 512), (70, 512)):
                srd(a, 48, base, nb)
                a.e("buffer_load_dword v125, v126, s[48:51], 0 offen")
            a.e(f"{lw}:")
    if opt.get("p1_wm") and not opt.get("p1_wl", 0): warm()
    a.e("s_barrier")

    def set_tile(expr_add):
        a.e(f"s_add_u32 s{sTile}, s2, {expr_add}")
        a.e(f"s_mul_i32 s{sTI}, s{sTile}, {TS*4}\ns_mul_i32 s{sTA}, s{sTile}, {TS*2}")
    V2 = opt.get("p1v", 1) == 2
    sNI, sNA = 47, 52
    def issue_quad(j):
        vo = "v1" if j < 6 else "v3"; va = "v2" if j < 6 else "v4"
        a.e(f"s_add_u32 s{sT0}, s{sTI}, {j*16384}\ns_add_u32 s{sT1}, s{sTA}, {j*8192}")
        a.e(f"buffer_load_dwordx4 {vr(O(j),4)}, {vo}, s[{S_OUT}:{S_OUT+3}], s{sT0} offen{ntflag}")
        a.e(f"buffer_load_dwordx4 {vr(I(j),4)}, {vo}, s[{S_IN}:{S_IN+3}], s{sT0} offen{ntflag}")
        a.e(f"buffer_load_dwordx2 {vr(G(j),2)}, {va}, s[{S_ANG}:{S_ANG+3}], s{sT1} offen{ntflag}")
    def issue_O(j):
        vo = "v1" if j < 6 else "v3"
        a.e(f"s_add_u32 s{sT0}, s{sNI}, {j*16384}")
        a.e(f"buffer_load_dwordx4 {vr(O(j),4)}, {vo}, s[{S_OUT}:{S_OUT+3}], s{sT0} offen{ntflag}")
    def issue_IG(j):
        vo = "v1" if j < 6 else "v3"; va = "v2" if j < 6 else "v4"
        a.e(f"s_add_u32 s{sT0}, s{sNI}, {j*16384}\ns_add_u32 s{sT1}, s{sNA}, {j*8192}")
        a.e(f"buffer_load_dwordx4 {vr(I(j),4)}, {vo}, s[{S_IN}:{S_IN+3}], s{sT0} offen{ntflag}")
        a.e(f"buffer_load_dwordx2 {vr(G(j),2)}, {va}, s[{S_ANG}:{S_ANG+3}], s{sT1} offen{ntflag}")
    def finalize(j, nxt):
        for k in range(4):
            a.e(f"v_lshl_or_b32 v{RK(j)+k}, v{O(j)+k}, 16, v{RK(j)+k}")
        if nxt: issue_O(j)

    def guard_last(begin):
        if begin:
            lab = a.label("P1_SKIPQ"); guard_last.lab = lab
            a.e(f"v_cmp_gt_u32 vcc, {LASTQ}, v0\ns_and_saveexec_b64 s[44:45], vcc\ns_cbranch_execz {lab}")
        else:
            a.e(f"{guard_last.lab}:\ns_mov_b64 exec, s[44:45]")

    def convert(j, cnt, younger, nxt=False):
        a.e(f"s_waitcnt vmcnt({younger})")
        if V2 and j >= 1:
            a.e("s_waitcnt lgkmcnt(0)")
            finalize(j-1, nxt)
        if j == 6: guard_last(True)
        t = T0
        for k in range(4):
            o, i = O(j)+k, I(j)+k
            a.e(f"v_mul_hi_u32_u24 v{t}, s{sM1}, v{o}")
            a.e(f"v_mul_hi_u32_u24 v{t+1}, s{sM2}, v{i}")
            a.e(f"v_mad_i32_i24 v{t+2}, v{t}, s{sNeg}, v{o}")
            a.e(f"v_lshl_add_u32 v{t+1}, v{t+1}, 8, v{t}")
            a.e(f"v_and_b32 v{t+3}, 15, v{t+2}")
            a.e(f"v_lshlrev_b32 v{o}, 2, v{t+1}")
            a.e(f"v_lshl_or_b32 v{t+3}, v{i}, 5, v{t+3}")
            a.e(f"v_lshrrev_b32 v{t+2}, 4, v{t+2}")
            a.e(f"ds_add_rtn_u32 v{RK(j)+k}, v{o}, v5 offset:{cnt}")
            a.e(f"v_lshl_or_b32 v{i}, v{t+2}, 24, v{t+3}")
        if j == 6: guard_last(False)

    def prefix(cnt, first=True):
        x, cc, y, w, c1 = T0, T0+1, T0+2, T0+3, T0+5
        p0, p1_ = T0+4, T0+5
        a.e("s_waitcnt lgkmcnt(0)")
        if V2: finalize(6, first)
        a.e("s_barrier")
        if S8:
            a.e(f"v_lshlrev_b32 v{T0+6}, 3, v0\nds_read_b64 v[{p0}:{p1_}], v{T0+6}")
        else:
            a.e(f"ds_read_b32 v{cc}, v6 offset:{cnt}")
        a.e(f"v_lshrrev_b32 v{w}, 4, v0\nv_and_b32 v{w}, 0xfc, v{w}")
        if S8:
            a.e(f"s_waitcnt lgkmcnt(0)\nv_add_u32 v{cc}, v{p0}, v{p1_}\nv_mov_b32 v{x}, v{cc}")
        else:
            a.e(f"s_waitcnt lgkmcnt(0)\nv_mov_b32 v{x}, v{cc}")
        for sh in (1, 2, 4, 8):
            a.e(f"s_nop 1\nv_add_u32_dpp v{x}, v{x}, v{x} row_shr:{sh} row_mask:0xf bank_mask:0xf")
        a.e(f"s_nop 1\nv_add_u32_dpp v{x}, v{x}, v{x} row_bcast:15 row_mask:0xa bank_mask:0xf")
        a.e(f"s_nop 1\nv_add_u32_dpp v{x}, v{x}, v{x} row_bcast:31 row_mask:0xc bank_mask:0xf")
        a.e(f"s_mov_b32 exec_lo, 0\ns_brev_b32 exec_hi, 1")
        a.e(f"ds_write_b32 v{w}, v{x} offset:{WSUM}")
        a.e("s_mov_b64 exec, -1")
        a.e("s_waitcnt lgkmcnt(0)\ns_barrier")
        a.e(f"v_and_b32 v{y}, 15, v0\nv_lshlrev_b32 v{y}, 2, v{y}\nds_read_b32 v{y}, v{y} offset:{WSUM}")
        a.e(f"s_waitcnt lgkmcnt(0)\nv_mov_b32 v{w}, v{y}")
        for sh in (1, 2, 4, 8):
            a.e(f"s_nop 1\nv_add_u32_dpp v{w}, v{w}, v{w} row_shr:{sh} row_mask:0xf bank_mask:0xf")
        a.e(f"v_sub_u32 v{w}, v{w}, v{y}\ns_nop 0\nv_readlane_b32 s{sT2}, v{w}, s{sWave}")
        a.e(f"v_sub_u32 v{y}, v{x}, v{cc}\ns_nop 1\nv_add_u32 v{y}, s{sT2}, v{y}")
        a.e(f"v_add_u32 v{x}, s{sT2}, v{x}")
        a.e(f"s_lshl_b32 s{sT0}, s{sTile}, 1")
        if S8:
            a.e(f"v_add_u32 v{p1_}, v{y}, v{p0}\nv_mov_b32 v{p0}, v{y}")
            a.e(f"ds_write_b64 v{T0+6}, v[{p0}:{p1_}]")
            v9 = "v11" if opt.get("p1_nooff") else "v9"
            if V2:
                if first:
                    a.e(f"v_mov_b32 v122, v{p0}\nv_mov_b32 v123, v{p1_}\nv_mov_b32 v124, v{x}")
                else:
                    a.e(f"s_lshl_b32 s53, s2, 2")
                    a.e(f"v_lshl_or_b32 v122, v{p0}, 16, v122\nv_lshl_or_b32 v123, v{p1_}, 16, v123\nv_lshl_or_b32 v124, v{x}, 16, v124")
                    if not opt.get("p1_late", 1):
                        a.e(f"buffer_store_dword v122, {v9}, s[{S_OFF}:{S_OFF+3}], s53 offen")
                        a.e(f"buffer_store_dword v123, {v9}, s[{S_OFF}:{S_OFF+3}], s53 offen offset:1024")
                        a.e(f"buffer_store_dword v124, v10, s[{S_OFF}:{S_OFF+3}], s53 offen")
            else:
                a.e(f"buffer_store_short v{p0}, {v9}, s[{S_OFF}:{S_OFF+3}], s{sT0} offen")
                a.e(f"buffer_store_short v{p1_}, {v9}, s[{S_OFF}:{S_OFF+3}], s{sT0} offen offset:1024")
        else:
            a.e(f"ds_write_b32 v6, v{y} offset:{cnt}")
            a.e(f"buffer_store_short v{y}, v9, s[{S_OFF}:{S_OFF+3}], s{sT0} offen")
        if not V2: a.e(f"buffer_store_short v{x}, v10, s[{S_OFF}:{S_OFF+3}], s{sT0} offen")
        a.e("s_waitcnt lgkmcnt(0)\ns_barrier")

    def scatter(cnt, next_loads):
        st = lambda j: T0 + 4*(j & 1)
        tmp = T0 + 8
        def reads(j):
            if j == 6: guard_last(True)
            for k in range(4):
                if V2:
                    a.e(f"v_lshrrev_b32 v{st(j)+k}, 16, v{RK(j)+k}")
            for k in range(4):
                if V2: a.e(f"ds_read_b32 v{st(j)+k}, v{st(j)+k} offset:{cnt}")
                else: a.e(f"ds_read_b32 v{st(j)+k}, v{O(j)+k} offset:{cnt}")
            if j == 6: guard_last(False)
        reads(0)
        for j in range(NQ):
            if j+1 < NQ:
                reads(j+1)
                a.e("s_waitcnt lgkmcnt(4)" if j+1 < 6 else "s_waitcnt lgkmcnt(0)")
            else:
                a.e("s_waitcnt lgkmcnt(0)")
            if j == 6: guard_last(True)
            for k in range(4):
                p = st(j)+k
                if V2: a.e(f"v_add_u32_sdwa v{p}, v{p}, v{RK(j)+k} dst_sel:DWORD dst_unused:UNUSED_PAD src0_sel:DWORD src1_sel:WORD_0")
                else: a.e(f"v_add_u32 v{p}, v{p}, v{RK(j)+k}")
                g = G(j) + (k >> 1)
                if opt.get("p1_aos", 0):
                    a.e(f"v_and_b32 v{tmp+2}, 1, v{p}\nv_mul_u32_u24 v{p}, 6, v{p}")
                    a.e(f"v_mad_i32_i24 v{tmp}, v{tmp+2}, -2, v{p}\nv_mad_i32_i24 v{tmp+1}, v{tmp+2}, -4, v{p}")
                    a.e(f"ds_write_b32 v{tmp}, v{I(j)+k} offset:{ABASE}")
                    a.e(f"ds_write_b16{'_d16_hi' if (k & 1) else ''} v{tmp+1}, v{g} offset:{ABASE+8}")
                else:
                    a.e(f"v_lshlrev_b32 v{tmp}, 2, v{p}")
                    a.e(f"v_lshl_add_u32 v{tmp+1}, v{p}, 1, s{sB}")
                    a.e(f"ds_write_b32 v{tmp}, v{I(j)+k} offset:{ABASE}")
                    a.e(f"ds_write_b16{'_d16_hi' if (k & 1) else ''} v{tmp+1}, v{g}")
            if j == 6: guard_last(False)
            if next_loads:
                if V2: issue_IG(j)
                else: issue_quad(j)
            elif V2 and opt.get("p1_late", 1):
                v9 = "v11" if opt.get("p1_nooff") else "v9"
                if j == 0: a.e(f"buffer_store_dword v122, {v9}, s[{S_OFF}:{S_OFF+3}], s53 offen{oflag}")
                if j == 1 and opt.get("p1_wm") and opt.get("p1_wl", 0): warm()
                if j == 3: a.e(f"buffer_store_dword v123, {v9}, s[{S_OFF}:{S_OFF+3}], s53 offen offset:1024{oflag}")
                if j == 5: a.e(f"buffer_store_dword v124, v10, s[{S_OFF}:{S_OFF+3}], s53 offen")
        a.e("s_waitcnt lgkmcnt(0)\ns_barrier")

    NCH = (TS*6//16 + 1023)//1024
    LASTC = TS*6//16 - (NCH-1)*1024
    def copyout_aos(final=False):
        if final: regs = [24 + 4*q for q in range(NCH)]
        else: regs = [94 + 4*q for q in range(7)] + [16, 20, 12]
        av, at = 125, 126
        a.e(f"v_add_u32 v{av}, {ABASE}, v1\nv_add_u32 v126, {ABASE+65536}, v1\nv_add_u32 v127, {ABASE+131072}, v1")
        a.e(f"v_cmp_gt_u32 vcc, {LASTC}, v0\nv_mov_b32 v8, v11\ns_nop 0\nv_cndmask_b32 v8, v8, v1, vcc")
        it = 0
        G1 = opt.get("p1_cg", 5)
        while it < NCH:
            n = min(G1, NCH-it)
            for q in range(n):
                i2 = it+q
                base = [125, 126, 127][i2 // 4]
                a.e(f"ds_read_b128 {vr(regs[i2],4)}, v{base} offset:{(i2 % 4)*16384}")
            for q in range(n):
                i2 = it+q
                a.e(f"s_waitcnt lgkmcnt({n-1-q})")
                a.e(f"s_add_u32 s{sT0}, s{sTR}, {i2*16384}")
                vo = "v1" if i2 < NCH-1 else "v8"
                if opt.get("p1_nost"): vo = "v11"
                a.e(f"buffer_store_dwordx4 {vr(regs[i2],4)}, {vo}, s[{S_REC}:{S_REC+3}], s{sT0} offen")
            it += n
        a.e("s_nop 3")
    def copyout(final=False):
        if opt.get("p1_aos", 0): return copyout_aos(final)
        tr = lambda q: 94 + 4*q
        av, bv = T0, T0+1
        a.e(f"v_lshlrev_b32 v{av}, 3, v0\nv_add_u32 v{av}, {ABASE}, v{av}")
        a.e(f"v_add_u32 v{bv}, s{sB}, v6")
        it = 0
        while it < NPI:
            n = min(7, NPI-it)
            for q in range(n):
                i2 = it+q
                if i2*8192 > 65535-8:
                    a.e(f"v_add_u32 v{T0+2}, {i2*8192}, v{av}")
                    a.e(f"ds_read_b64 {vr(tr(q),2)}, v{T0+2}")
                else:
                    a.e(f"ds_read_b64 {vr(tr(q),2)}, v{av} offset:{i2*8192}")
                a.e(f"ds_read_b32 v{tr(q)+2}, v{bv} offset:{i2*4096}")
            for q in range(n):
                i2 = it+q
                a.e(f"s_waitcnt lgkmcnt({2*(n-1-q)})")
                a.e(f"s_add_u32 s{sT0}, s{sTR}, {i2*12288}")
                vo = "v7" if i2 < NPI-1 else "v8"
                if opt.get("p1_nost"): vo = "v11"
                a.e(f"buffer_store_dwordx3 {vr(tr(q),3)}, {vo}, s[{S_REC}:{S_REC+3}], s{sT0} offen" + ["", " nt", " sc1", " sc0 sc1", " sc0", " sc1 nt"][opt.get("p1_st", 0)])
            it += n
            if it < NPI:
                a.e("s_nop 1")
    if V2:
        PR = opt.get("p1prof")
        nst = [0]
        def stamp():
            if not PR: return
            k = nst[0]; nst[0] += 1
            a.e(f"s_memtime s[{60+2*k}:{61+2*k}]")
        stamp()
        a.e(f"s_lshl_b32 s{sTile}, s2, 1")
        a.e(f"s_mul_i32 s{sTI}, s{sTile}, {TS*4}\ns_mul_i32 s{sTA}, s{sTile}, {TS*2}")
        a.e(f"s_add_u32 s{sNI}, s{sTI}, {TS*4}\ns_add_u32 s{sNA}, s{sTA}, {TS*2}")
        for j in range(NQ): issue_quad(j)
        stamp()
        for j in range(NQ):
            convert(j, CNT0, 3*(6-j) + max(j-1, 0), True)
            if j == 0: stamp()
        stamp()
        prefix(CNT0, True)
        stamp()
        a.e(f"s_mul_i32 s{sTR}, s{sTile}, {TS*6}")
        scatter(CNT0, True)
        stamp()
        a.e(f"v_lshlrev_b32 v{T0+6}, 3, v0\nv_mov_b32 v{T0+4}, 0\nv_mov_b32 v{T0+5}, 0\nds_write_b64 v{T0+6}, v[{T0+4}:{T0+5}]")
        if opt.get("p1_eb", 1):
            a.e("s_waitcnt lgkmcnt(0)\ns_barrier")
            copyout()
        else:
            copyout()
            a.e("s_waitcnt lgkmcnt(0)\ns_barrier")
        stamp()
        for j in range(NQ):
            convert(j, CNT0, 2*(6-j) + (0 if opt.get("p1_safe", 1) else (NCH if opt.get("p1_aos", 0) else NPI) - 1), False)
            if j == 0: stamp()
        stamp()
        prefix(CNT0, False)
        stamp()
        scatter(CNT0, False)
        stamp()
        a.e(f"s_add_u32 s{sTR}, s{sTR}, {TS*6}")
        copyout(True)
        stamp()
        if PR:
            a.e("s_waitcnt vmcnt(0)")
            stamp()
            a.e("s_waitcnt lgkmcnt(0)")
            sk = a.label("P1PR")
            a.e(f"s_and_b32 s58, s2, 63\ns_cmp_lg_u32 s58, 0\ns_cbranch_scc1 {sk}\ns_cmp_lg_u32 s{sWave}, {opt.get('p1pw', 0)}\ns_cbranch_scc1 {sk}")
            a.e("s_load_dwordx2 s[58:59], s[0:1], 96\ns_waitcnt lgkmcnt(0)")
            a.e("s_lshr_b32 s57, s2, 6\ns_lshl_b32 s57, s57, 6\nv_mov_b32 v12, s57")
            for k in range(nst[0]):
                a.e(f"s_sub_u32 s56, s{60+2*k}, s60\nv_mov_b32 v13, s56\nglobal_store_dword v12, v13, s[58:59] offset:{4*k}")
            a.e(f"{sk}:")
    else:
        set_tile(0)
        for j in range(NQ): issue_quad(j)
        for j in range(NQ): convert(j, CNT0, 3*(6-j))
        prefix(CNT0)
        a.e(f"s_mul_i32 s{sTR}, s{sTile}, {TS*6}")
        a.e(f"s_mov_b32 s46, s{sTR}")
        set_tile(NTILE//2)
        scatter(CNT0, True)
        a.e(f"s_mov_b32 s{sTR}, s46")
        C1 = CNT0 if S8 else CNT1
        if S8:
            a.e(f"v_lshlrev_b32 v{T0+6}, 3, v0\nv_mov_b32 v{T0+4}, 0\nv_mov_b32 v{T0+5}, 0\nds_write_b64 v{T0+6}, v[{T0+4}:{T0+5}]")
        copyout()
        if S8: a.e("s_waitcnt lgkmcnt(0)\ns_barrier")
        for j in range(NQ): convert(j, C1, 3*(6-j) + NPI)
        prefix(C1)
        scatter(C1, False)
        a.e(f"s_mul_i32 s{sTR}, s{sTile}, {TS*6}")
        copyout()
    if opt.get("rt2"):
        a.e("s_waitcnt vmcnt(0) lgkmcnt(0)\ns_memrealtime s[56:57]\ns_load_dwordx2 s[58:59], s[0:1], 104\ns_waitcnt lgkmcnt(0)")
        a.e(f"s_add_u32 s58, s58, {121<<20}\ns_addc_u32 s59, s59, 0\ns_lshl_b32 s60, s2, 8\ns_lshl_b32 s61, s{sWave}, 4\ns_add_u32 s60, s60, s61")
        a.e("v_mov_b32 v12, s60\nv_mov_b32 v16, s54\nv_mov_b32 v17, s55\nv_mov_b32 v18, s56\nv_mov_b32 v19, s57\nglobal_store_dwordx4 v12, v[16:19], s[58:59]")
    a.e("P1_END:\ns_endpgm")

def kd(name, vgpr, sgpr, accum):
    return f""".amdhsa_kernel {name}
  .amdhsa_next_free_vgpr {vgpr}
  .amdhsa_next_free_sgpr {sgpr}
  .amdhsa_accum_offset {accum}
  .amdhsa_group_segment_fixed_size 0
  .amdhsa_kernarg_size 112
  .amdhsa_user_sgpr_count 2
  .amdhsa_user_sgpr_kernarg_segment_ptr 1
  .amdhsa_system_sgpr_workgroup_id_x 1
  .amdhsa_float_denorm_mode_32 3
  .amdhsa_float_denorm_mode_16_64 3
.end_amdhsa_kernel
"""
```

```python
from common import *

CNT0, CNT1, WSUM, ABASE = 0, 4096, 8192, 8448
BBASE = ABASE + TS*4
P1_LDS = BBASE + TS*2
NQ = 7
LASTQ = TS//4 - 6*1024
NPI = 13
LASTP = TS//2 - 12*1024

def gen_p1(a, name, opt):
    S8 = opt.get('S', 8) == 8
    NBIN = 2048 if S8 else 1024
    MS = 85899 if S8 else M_S
    if opt.get('nsl'): MS = (opt['nsl'] << 32)//400000
    QB = 24
    O = lambda j: QB + 10*j
    I = lambda j: QB + 10*j + 4
    G = lambda j: QB + 10*j + 8
    RK = lambda j: 94 + 4*j
    T0 = 12
    S_IN, S_OUT, S_ANG, S_REC, S_OFF = 8, 12, 16, 20, 24
    sM1, sM2, sNeg, sB, sTile, sTI, sTA, sTR, sWave = 32, 33, 34, 35, 36, 37, 38, 39, 40
    sT0, sT1, sT2 = 41, 42, 43
    ntflag = ["", " nt", " sc1 nt", " sc0 sc1 nt", " sc0 nt"][opt.get("p1_nt", 0)]
    oflag = ["", " nt", " sc1", " sc0 sc1"][opt.get("p1_of", 0)]
    a.e(f".p2align 8\n.type {name},@function\n{name}:")
    a.e(f"s_cmp_ge_u32 s2, {NTILE//2}\ns_cbranch_scc1 P1_END")
    if opt.get("rt2"): a.e("s_memrealtime s[54:55]")
    a.e("s_load_dwordx4 s[4:7], s[0:1], 8")
    a.e("s_load_dwordx2 s[28:29], s[0:1], 32")
    a.e("s_load_dwordx2 s[30:31], s[0:1], 104")
    if opt.get("p1_wm"):
        a.e("s_load_dwordx2 s[74:75], s[0:1], 0")
        if opt.get("p1_wm", 0) >= 2:
            a.e("s_load_dwordx2 s[62:63], s[0:1], 24\ns_load_dwordx2 s[72:73], s[0:1], 40\ns_load_dwordx4 s[64:67], s[0:1], 56\ns_load_dwordx4 s[68:71], s[0:1], 72")
    a.e("v_lshlrev_b32 v1, 4, v0\nv_lshlrev_b32 v2, 3, v0")
    a.e("v_bfrev_b32 v11, 1")
    a.e(f"v_cmp_gt_u32 vcc, {LASTQ}, v0")
    a.e(f"s_mov_b32 s{sM1}, {M_B}\ns_mov_b32 s{sM2}, {MS}\ns_mov_b32 s{sNeg}, {-BS}\ns_mov_b32 s{sB}, {BBASE}")
    a.e("v_cndmask_b32 v3, v11, v1, vcc\nv_cndmask_b32 v4, v11, v2, vcc")
    a.e("v_mov_b32 v5, 1\nv_lshlrev_b32 v6, 2, v0\nv_mul_u32_u24 v7, 12, v0")
    a.e(f"v_cmp_gt_u32 vcc, {LASTP}, v0\nv_lshlrev_b32 v9, {11 if S8 else 10}, v0\ns_nop 0\nv_cndmask_b32 v8, v11, v7, vcc")
    a.e(f"v_cmp_eq_u32 vcc, 1023, v0\nv_mov_b32 v12, {NBIN*1024}\ns_nop 0\nv_cndmask_b32 v10, v11, v12, vcc")
    a.e(f"v_lshrrev_b32 v12, 6, v0\ns_nop 0\nv_readfirstlane_b32 s{sWave}, v12")
    a.e("v_mov_b32 v13, 0\nds_write_b32 v6, v13 offset:%d\nds_write_b32 v6, v13 offset:%d" % (CNT0, CNT1))
    a.e("s_waitcnt lgkmcnt(0)")
    srd(a, S_IN, 4, T*4); srd(a, S_OUT, 6, T*4); srd(a, S_ANG, 28, T*2); srd(a, S_REC, 30, NTILE*TS*6)
    a.e(f"s_add_u32 s30, s30, {OFFS_OFF}\ns_addc_u32 s31, s31, 0")
    O8 = opt.get("o8", 1) and opt.get("p1v", 1) == 2
    srd(a, S_OFF, 30, (NBIN//2+1)*2048 if O8 else (NBIN+1)*512*2)
    def warm():
        if not opt.get("p1_nom"):
            srd(a, 48, 74, E*32)
            a.e("s_mul_i32 s46, s2, 391\nv_add_u32 v126, s46, v0\nv_lshlrev_b32 v126, 7, v126")
            a.e("v_cmp_gt_u32 vcc, 391, v0\ns_and_saveexec_b64 s[54:55], vcc\nbuffer_load_dword v125, v126, s[48:51], 0 offen\ns_mov_b64 exec, s[54:55]")
        if opt.get("p1_wm", 0) >= 2:
            lw = a.label("P1WD")
            a.e(f"s_cmp_lg_u32 s{sWave}, 15\ns_cbranch_scc1 {lw}")
            srd(a, 48, 62, E*2)
            a.e("s_mul_i32 s46, s2, 25\nv_and_b32 v126, 63, v0\nv_add_u32 v126, s46, v126\nv_lshlrev_b32 v126, 7, v126")
            a.e("s_mov_b64 exec, 0x1ffffff\nbuffer_load_dword v125, v126, s[48:51], 0 offen\ns_mov_b64 exec, -1")
            a.e(f"{lw}:")
            lw = a.label("P1WW")
            a.e(f"s_cmp_lg_u32 s{sWave}, 14\ns_cbranch_scc1 {lw}\ns_cmp_ge_u32 s2, 8\ns_cbranch_scc1 {lw}")
            a.e("v_and_b32 v126, 63, v0\nv_lshlrev_b32 v126, 7, v126")
            for base, nb in ((72, 16), (64, 256), (66, 768), (68, 512), (70, 512)):
                srd(a, 48, base, nb)
                a.e("buffer_load_dword v125, v126, s[48:51], 0 offen")
            a.e(f"{lw}:")
    if opt.get("p1_wm") and not opt.get("p1_wl", 0): warm()
    a.e("s_barrier")

    def set_tile(expr_add):
        a.e(f"s_add_u32 s{sTile}, s2, {expr_add}")
        a.e(f"s_mul_i32 s{sTI}, s{sTile}, {TS*4}\ns_mul_i32 s{sTA}, s{sTile}, {TS*2}")
    V2 = opt.get("p1v", 1) == 2
    sNI, sNA = 47, 52
    def issue_quad(j):
        vo = "v1" if j < 6 else "v3"; va = "v2" if j < 6 else "v4"
        a.e(f"s_add_u32 s{sT0}, s{sTI}, {j*16384}\ns_add_u32 s{sT1}, s{sTA}, {j*8192}")
        a.e(f"buffer_load_dwordx4 {vr(O(j),4)}, {vo}, s[{S_OUT}:{S_OUT+3}], s{sT0} offen{ntflag}")
        a.e(f"buffer_load_dwordx4 {vr(I(j),4)}, {vo}, s[{S_IN}:{S_IN+3}], s{sT0} offen{ntflag}")
        a.e(f"buffer_load_dwordx2 {vr(G(j),2)}, {va}, s[{S_ANG}:{S_ANG+3}], s{sT1} offen{ntflag}")
    def issue_O(j):
        vo = "v1" if j < 6 else "v3"
        a.e(f"s_add_u32 s{sT0}, s{sNI}, {j*16384}")
        a.e(f"buffer_load_dwordx4 {vr(O(j),4)}, {vo}, s[{S_OUT}:{S_OUT+3}], s{sT0} offen{ntflag}")
    def issue_IG(j):
        vo = "v1" if j < 6 else "v3"; va = "v2" if j < 6 else "v4"
        a.e(f"s_add_u32 s{sT0}, s{sNI}, {j*16384}\ns_add_u32 s{sT1}, s{sNA}, {j*8192}")
        a.e(f"buffer_load_dwordx4 {vr(I(j),4)}, {vo}, s[{S_IN}:{S_IN+3}], s{sT0} offen{ntflag}")
        a.e(f"buffer_load_dwordx2 {vr(G(j),2)}, {va}, s[{S_ANG}:{S_ANG+3}], s{sT1} offen{ntflag}")
    def finalize(j, nxt):
        for k in range(4):
            a.e(f"v_lshl_or_b32 v{RK(j)+k}, v{O(j)+k}, 16, v{RK(j)+k}")
        if nxt: issue_O(j)

    def guard_last(begin):
        if begin:
            lab = a.label("P1_SKIPQ"); guard_last.lab = lab
            a.e(f"v_cmp_gt_u32 vcc, {LASTQ}, v0\ns_and_saveexec_b64 s[44:45], vcc\ns_cbranch_execz {lab}")
        else:
            a.e(f"{guard_last.lab}:\ns_mov_b64 exec, s[44:45]")

    def convert(j, cnt, younger, nxt=False):
        a.e(f"s_waitcnt vmcnt({younger})")
        if V2 and j >= 1:
            a.e("s_waitcnt lgkmcnt(0)")
            finalize(j-1, nxt)
        if j == 6: guard_last(True)
        t = T0
        for k in range(4):
            o, i = O(j)+k, I(j)+k
            a.e(f"v_mul_hi_u32_u24 v{t}, s{sM1}, v{o}")
            a.e(f"v_mul_hi_u32_u24 v{t+1}, s{sM2}, v{i}")
            a.e(f"v_mad_i32_i24 v{t+2}, v{t}, s{sNeg}, v{o}")
            a.e(f"v_lshl_add_u32 v{t+1}, v{t+1}, 8, v{t}")
            a.e(f"v_and_b32 v{t+3}, 15, v{t+2}")
            a.e(f"v_lshlrev_b32 v{o}, 2, v{t+1}")
            a.e(f"v_lshl_or_b32 v{t+3}, v{i}, 5, v{t+3}")
            a.e(f"v_lshrrev_b32 v{t+2}, 4, v{t+2}")
            a.e(f"ds_add_rtn_u32 v{RK(j)+k}, v{o}, v5 offset:{cnt}")
            a.e(f"v_lshl_or_b32 v{i}, v{t+2}, 24, v{t+3}")
        if j == 6: guard_last(False)

    def prefix(cnt, first=True):
        x, cc, y, w, c1 = T0, T0+1, T0+2, T0+3, T0+5
        p0, p1_ = T0+4, T0+5
        a.e("s_waitcnt lgkmcnt(0)")
        if V2: finalize(6, first)
        a.e("s_barrier")
        if S8:
            a.e(f"v_lshlrev_b32 v{T0+6}, 3, v0\nds_read_b64 v[{p0}:{p1_}], v{T0+6}")
        else:
            a.e(f"ds_read_b32 v{cc}, v6 offset:{cnt}")
        a.e(f"v_lshrrev_b32 v{w}, 4, v0\nv_and_b32 v{w}, 0xfc, v{w}")
        if S8:
            a.e(f"s_waitcnt lgkmcnt(0)\nv_add_u32 v{cc}, v{p0}, v{p1_}\nv_mov_b32 v{x}, v{cc}")
        else:
            a.e(f"s_waitcnt lgkmcnt(0)\nv_mov_b32 v{x}, v{cc}")
        for sh in (1, 2, 4, 8):
            a.e(f"s_nop 1\nv_add_u32_dpp v{x}, v{x}, v{x} row_shr:{sh} row_mask:0xf bank_mask:0xf")
        a.e(f"s_nop 1\nv_add_u32_dpp v{x}, v{x}, v{x} row_bcast:15 row_mask:0xa bank_mask:0xf")
        a.e(f"s_nop 1\nv_add_u32_dpp v{x}, v{x}, v{x} row_bcast:31 row_mask:0xc bank_mask:0xf")
        a.e(f"s_mov_b32 exec_lo, 0\ns_brev_b32 exec_hi, 1")
        a.e(f"ds_write_b32 v{w}, v{x} offset:{WSUM}")
        a.e("s_mov_b64 exec, -1")
        a.e("s_waitcnt lgkmcnt(0)\ns_barrier")
        a.e(f"v_and_b32 v{y}, 15, v0\nv_lshlrev_b32 v{y}, 2, v{y}\nds_read_b32 v{y}, v{y} offset:{WSUM}")
        a.e(f"s_waitcnt lgkmcnt(0)\nv_mov_b32 v{w}, v{y}")
        for sh in (1, 2, 4, 8):
            a.e(f"s_nop 1\nv_add_u32_dpp v{w}, v{w}, v{w} row_shr:{sh} row_mask:0xf bank_mask:0xf")
        a.e(f"v_sub_u32 v{w}, v{w}, v{y}\ns_nop 0\nv_readlane_b32 s{sT2}, v{w}, s{sWave}")
        a.e(f"v_sub_u32 v{y}, v{x}, v{cc}\ns_nop 1\nv_add_u32 v{y}, s{sT2}, v{y}")
        a.e(f"v_add_u32 v{x}, s{sT2}, v{x}")
        a.e(f"s_lshl_b32 s{sT0}, s{sTile}, 1")
        if S8:
            a.e(f"v_add_u32 v{p1_}, v{y}, v{p0}\nv_mov_b32 v{p0}, v{y}")
            a.e(f"ds_write_b64 v{T0+6}, v[{p0}:{p1_}]")
            v9 = "v11" if opt.get("p1_nooff") else "v9"
            if V2:
                if first:
                    a.e(f"v_mov_b32 v122, v{p0}\nv_mov_b32 v123, v{p1_}\nv_mov_b32 v124, v{x}")
                else:
                    a.e(f"s_lshl_b32 s53, s2, {3 if O8 else 2}")
                    a.e(f"v_lshl_or_b32 v122, v{p0}, 16, v122\nv_lshl_or_b32 v123, v{p1_}, 16, v123\nv_lshl_or_b32 v124, v{x}, 16, v124")
                    if not opt.get("p1_late", 1):
                        a.e(f"buffer_store_dword v122, {v9}, s[{S_OFF}:{S_OFF+3}], s53 offen")
                        a.e(f"buffer_store_dword v123, {v9}, s[{S_OFF}:{S_OFF+3}], s53 offen offset:1024")
                        a.e(f"buffer_store_dword v124, v10, s[{S_OFF}:{S_OFF+3}], s53 offen")
            else:
                a.e(f"buffer_store_short v{p0}, {v9}, s[{S_OFF}:{S_OFF+3}], s{sT0} offen")
                a.e(f"buffer_store_short v{p1_}, {v9}, s[{S_OFF}:{S_OFF+3}], s{sT0} offen offset:1024")
        else:
            a.e(f"ds_write_b32 v6, v{y} offset:{cnt}")
            a.e(f"buffer_store_short v{y}, v9, s[{S_OFF}:{S_OFF+3}], s{sT0} offen")
        if not V2: a.e(f"buffer_store_short v{x}, v10, s[{S_OFF}:{S_OFF+3}], s{sT0} offen")
        a.e("s_waitcnt lgkmcnt(0)\ns_barrier")

    def scatter(cnt, next_loads):
        st = lambda j: T0 + 4*(j & 1)
        tmp = T0 + 8
        def reads(j):
            if j == 6: guard_last(True)
            for k in range(4):
                if V2:
                    a.e(f"v_lshrrev_b32 v{st(j)+k}, 16, v{RK(j)+k}")
            for k in range(4):
                if V2: a.e(f"ds_read_b32 v{st(j)+k}, v{st(j)+k} offset:{cnt}")
                else: a.e(f"ds_read_b32 v{st(j)+k}, v{O(j)+k} offset:{cnt}")
            if j == 6: guard_last(False)
        reads(0)
        for j in range(NQ):
            if j+1 < NQ:
                reads(j+1)
                a.e("s_waitcnt lgkmcnt(4)" if j+1 < 6 else "s_waitcnt lgkmcnt(0)")
            else:
                a.e("s_waitcnt lgkmcnt(0)")
            if j == 6: guard_last(True)
            for k in range(4):
                p = st(j)+k
                if V2: a.e(f"v_add_u32_sdwa v{p}, v{p}, v{RK(j)+k} dst_sel:DWORD dst_unused:UNUSED_PAD src0_sel:DWORD src1_sel:WORD_0")
                else: a.e(f"v_add_u32 v{p}, v{p}, v{RK(j)+k}")
                g = G(j) + (k >> 1)
                if opt.get("p1_aos", 0):
                    a.e(f"v_and_b32 v{tmp+2}, 1, v{p}\nv_mul_u32_u24 v{p}, 6, v{p}")
                    a.e(f"v_mad_i32_i24 v{tmp}, v{tmp+2}, -2, v{p}\nv_mad_i32_i24 v{tmp+1}, v{tmp+2}, -4, v{p}")
                    a.e(f"ds_write_b32 v{tmp}, v{I(j)+k} offset:{ABASE}")
                    a.e(f"ds_write_b16{'_d16_hi' if (k & 1) else ''} v{tmp+1}, v{g} offset:{ABASE+8}")
                else:
                    a.e(f"v_lshlrev_b32 v{tmp}, 2, v{p}")
                    a.e(f"v_lshl_add_u32 v{tmp+1}, v{p}, 1, s{sB}")
                    a.e(f"ds_write_b32 v{tmp}, v{I(j)+k} offset:{ABASE}")
                    a.e(f"ds_write_b16{'_d16_hi' if (k & 1) else ''} v{tmp+1}, v{g}")
            if j == 6: guard_last(False)
            if next_loads:
                if V2: issue_IG(j)
                else: issue_quad(j)
            elif V2 and opt.get("p1_late", 1):
                v9 = "v11" if opt.get("p1_nooff") else "v9"
                if j == 0:
                    if O8: a.e(f"buffer_store_dwordx2 v[122:123], {v9}, s[{S_OFF}:{S_OFF+3}], s53 offen{oflag}")
                    else: a.e(f"buffer_store_dword v122, {v9}, s[{S_OFF}:{S_OFF+3}], s53 offen{oflag}")
                if j == 1 and opt.get("p1_wm") and opt.get("p1_wl", 0): warm()
                if j == 3 and not O8: a.e(f"buffer_store_dword v123, {v9}, s[{S_OFF}:{S_OFF+3}], s53 offen offset:1024{oflag}")
                if j == 5: a.e(f"buffer_store_dword v124, v10, s[{S_OFF}:{S_OFF+3}], s53 offen")
        a.e("s_waitcnt lgkmcnt(0)\ns_barrier")

    NCH = (TS*6//16 + 1023)//1024
    LASTC = TS*6//16 - (NCH-1)*1024
    def copyout_aos(final=False):
        if final: regs = [24 + 4*q for q in range(NCH)]
        else: regs = [94 + 4*q for q in range(7)] + [16, 20, 12]
        av, at = 125, 126
        a.e(f"v_add_u32 v{av}, {ABASE}, v1\nv_add_u32 v126, {ABASE+65536}, v1\nv_add_u32 v127, {ABASE+131072}, v1")
        a.e(f"v_cmp_gt_u32 vcc, {LASTC}, v0\nv_mov_b32 v8, v11\ns_nop 0\nv_cndmask_b32 v8, v8, v1, vcc")
        it = 0
        G1 = opt.get("p1_cg", 5)
        while it < NCH:
            n = min(G1, NCH-it)
            for q in range(n):
                i2 = it+q
                base = [125, 126, 127][i2 // 4]
                a.e(f"ds_read_b128 {vr(regs[i2],4)}, v{base} offset:{(i2 % 4)*16384}")
            for q in range(n):
                i2 = it+q
                a.e(f"s_waitcnt lgkmcnt({n-1-q})")
                a.e(f"s_add_u32 s{sT0}, s{sTR}, {i2*16384}")
                vo = "v1" if i2 < NCH-1 else "v8"
                if opt.get("p1_nost"): vo = "v11"
                a.e(f"buffer_store_dwordx4 {vr(regs[i2],4)}, {vo}, s[{S_REC}:{S_REC+3}], s{sT0} offen")
            it += n
        a.e("s_nop 3")
    def copyout(final=False):
        if opt.get("p1_aos", 0): return copyout_aos(final)
        tr = lambda q: 94 + 4*q
        av, bv = T0, T0+1
        a.e(f"v_lshlrev_b32 v{av}, 3, v0\nv_add_u32 v{av}, {ABASE}, v{av}")
        a.e(f"v_add_u32 v{bv}, s{sB}, v6")
        it = 0
        while it < NPI:
            n = min(7, NPI-it)
            for q in range(n):
                i2 = it+q
                if i2*8192 > 65535-8:
                    a.e(f"v_add_u32 v{T0+2}, {i2*8192}, v{av}")
                    a.e(f"ds_read_b64 {vr(tr(q),2)}, v{T0+2}")
                else:
                    a.e(f"ds_read_b64 {vr(tr(q),2)}, v{av} offset:{i2*8192}")
                a.e(f"ds_read_b32 v{tr(q)+2}, v{bv} offset:{i2*4096}")
            for q in range(n):
                i2 = it+q
                a.e(f"s_waitcnt lgkmcnt({2*(n-1-q)})")
                a.e(f"s_add_u32 s{sT0}, s{sTR}, {i2*12288}")
                vo = "v7" if i2 < NPI-1 else "v8"
                if opt.get("p1_nost"): vo = "v11"
                a.e(f"buffer_store_dwordx3 {vr(tr(q),3)}, {vo}, s[{S_REC}:{S_REC+3}], s{sT0} offen" + ["", " nt", " sc1", " sc0 sc1", " sc0", " sc1 nt"][opt.get("p1_st", 0)])
            it += n
            if it < NPI:
                a.e("s_nop 1")
    if V2:
        PR = opt.get("p1prof")
        nst = [0]
        def stamp():
            if not PR: return
            k = nst[0]; nst[0] += 1
            a.e(f"s_memtime s[{60+2*k}:{61+2*k}]")
        stamp()
        a.e(f"s_lshl_b32 s{sTile}, s2, 1")
        a.e(f"s_mul_i32 s{sTI}, s{sTile}, {TS*4}\ns_mul_i32 s{sTA}, s{sTile}, {TS*2}")
        a.e(f"s_add_u32 s{sNI}, s{sTI}, {TS*4}\ns_add_u32 s{sNA}, s{sTA}, {TS*2}")
        for j in range(NQ): issue_quad(j)
        stamp()
        for j in range(NQ):
            convert(j, CNT0, 3*(6-j) + max(j-1, 0), True)
            if j == 0: stamp()
        stamp()
        prefix(CNT0, True)
        stamp()
        a.e(f"s_mul_i32 s{sTR}, s{sTile}, {TS*6}")
        scatter(CNT0, True)
        stamp()
        a.e(f"v_lshlrev_b32 v{T0+6}, 3, v0\nv_mov_b32 v{T0+4}, 0\nv_mov_b32 v{T0+5}, 0\nds_write_b64 v{T0+6}, v[{T0+4}:{T0+5}]")
        if opt.get("p1_eb", 1):
            a.e("s_waitcnt lgkmcnt(0)\ns_barrier")
            copyout()
        else:
            copyout()
            a.e("s_waitcnt lgkmcnt(0)\ns_barrier")
        stamp()
        for j in range(NQ):
            convert(j, CNT0, 2*(6-j) + (0 if opt.get("p1_safe", 1) else (NCH if opt.get("p1_aos", 0) else NPI) - 1), False)
            if j == 0: stamp()
        stamp()
        prefix(CNT0, False)
        stamp()
        scatter(CNT0, False)
        stamp()
        a.e(f"s_add_u32 s{sTR}, s{sTR}, {TS*6}")
        copyout(True)
        stamp()
        if PR:
            a.e("s_waitcnt vmcnt(0)")
            stamp()
            a.e("s_waitcnt lgkmcnt(0)")
            sk = a.label("P1PR")
            a.e(f"s_and_b32 s58, s2, 63\ns_cmp_lg_u32 s58, 0\ns_cbranch_scc1 {sk}\ns_cmp_lg_u32 s{sWave}, {opt.get('p1pw', 0)}\ns_cbranch_scc1 {sk}")
            a.e("s_load_dwordx2 s[58:59], s[0:1], 96\ns_waitcnt lgkmcnt(0)")
            a.e("s_lshr_b32 s57, s2, 6\ns_lshl_b32 s57, s57, 6\nv_mov_b32 v12, s57")
            for k in range(nst[0]):
                a.e(f"s_sub_u32 s56, s{60+2*k}, s60\nv_mov_b32 v13, s56\nglobal_store_dword v12, v13, s[58:59] offset:{4*k}")
            a.e(f"{sk}:")
    else:
        set_tile(0)
        for j in range(NQ): issue_quad(j)
        for j in range(NQ): convert(j, CNT0, 3*(6-j))
        prefix(CNT0)
        a.e(f"s_mul_i32 s{sTR}, s{sTile}, {TS*6}")
        a.e(f"s_mov_b32 s46, s{sTR}")
        set_tile(NTILE//2)
        scatter(CNT0, True)
        a.e(f"s_mov_b32 s{sTR}, s46")
        C1 = CNT0 if S8 else CNT1
        if S8:
            a.e(f"v_lshlrev_b32 v{T0+6}, 3, v0\nv_mov_b32 v{T0+4}, 0\nv_mov_b32 v{T0+5}, 0\nds_write_b64 v{T0+6}, v[{T0+4}:{T0+5}]")
        copyout()
        if S8: a.e("s_waitcnt lgkmcnt(0)\ns_barrier")
        for j in range(NQ): convert(j, C1, 3*(6-j) + NPI)
        prefix(C1)
        scatter(C1, False)
        a.e(f"s_mul_i32 s{sTR}, s{sTile}, {TS*6}")
        copyout()
    if opt.get("rt2"):
        a.e("s_waitcnt vmcnt(0) lgkmcnt(0)\ns_memrealtime s[56:57]\ns_load_dwordx2 s[58:59], s[0:1], 104\ns_waitcnt lgkmcnt(0)")
        a.e(f"s_add_u32 s58, s58, {121<<20}\ns_addc_u32 s59, s59, 0\ns_lshl_b32 s60, s2, 8\ns_lshl_b32 s61, s{sWave}, 4\ns_add_u32 s60, s60, s61")
        a.e("v_mov_b32 v12, s60\nv_mov_b32 v16, s54\nv_mov_b32 v17, s55\nv_mov_b32 v18, s56\nv_mov_b32 v19, s57\nglobal_store_dwordx4 v12, v[16:19], s[58:59]")
    a.e("P1_END:\ns_endpgm")

def kd(name, vgpr, sgpr, accum):
    return f""".amdhsa_kernel {name}
  .amdhsa_next_free_vgpr {vgpr}
  .amdhsa_next_free_sgpr {sgpr}
  .amdhsa_accum_offset {accum}
  .amdhsa_group_segment_fixed_size 0
  .amdhsa_kernarg_size 112
  .amdhsa_user_sgpr_count 2
  .amdhsa_user_sgpr_kernarg_segment_ptr 1
  .amdhsa_system_sgpr_workgroup_id_x 1
  .amdhsa_float_denorm_mode_32 3
  .amdhsa_float_denorm_mode_16_64 3
.end_amdhsa_kernel
"""
```

```python
from common import *

CNT0, CNT1, WSUM, ABASE = 0, 4096, 8192, 8448
BBASE = ABASE + TS*4
P1_LDS = BBASE + TS*2
NQ = 7
LASTQ = TS//4 - 6*1024
NPI = 13
LASTP = TS//2 - 12*1024

def gen_p1(a, name, opt):
    S8 = opt.get('S', 8) == 8
    NBIN = 2048 if S8 else 1024
    MS = 85899 if S8 else M_S
    if opt.get('nsl'): MS = (opt['nsl'] << 32)//400000
    QB = 24
    O = lambda j: QB + 10*j
    I = lambda j: QB + 10*j + 4
    G = lambda j: QB + 10*j + 8
    RK = lambda j: 94 + 4*j
    T0 = 12
    S_IN, S_OUT, S_ANG, S_REC, S_OFF = 8, 12, 16, 20, 24
    sM1, sM2, sNeg, sB, sTile, sTI, sTA, sTR, sWave = 32, 33, 34, 35, 36, 37, 38, 39, 40
    sT0, sT1, sT2 = 41, 42, 43
    ntflag = ["", " nt", " sc1 nt", " sc0 sc1 nt", " sc0 nt"][opt.get("p1_nt", 0)]
    oflag = ["", " nt", " sc1", " sc0 sc1"][opt.get("p1_of", 0)]
    a.e(f".p2align 8\n.type {name},@function\n{name}:")
    a.e(f"s_cmp_ge_u32 s2, {NTILE//2}\ns_cbranch_scc1 P1_END")
    if opt.get("rt2"): a.e("s_memrealtime s[54:55]")
    a.e("s_load_dwordx4 s[4:7], s[0:1], 8")
    a.e("s_load_dwordx2 s[28:29], s[0:1], 32")
    a.e("s_load_dwordx2 s[30:31], s[0:1], 104")
    if opt.get("p1_wm"):
        a.e("s_load_dwordx2 s[74:75], s[0:1], 0")
        if opt.get("p1_wm", 0) >= 2:
            a.e("s_load_dwordx2 s[62:63], s[0:1], 24\ns_load_dwordx2 s[72:73], s[0:1], 40\ns_load_dwordx4 s[64:67], s[0:1], 56\ns_load_dwordx4 s[68:71], s[0:1], 72")
    a.e("v_lshlrev_b32 v1, 4, v0\nv_lshlrev_b32 v2, 3, v0")
    a.e("v_bfrev_b32 v11, 1")
    a.e(f"v_cmp_gt_u32 vcc, {LASTQ}, v0")
    a.e(f"s_mov_b32 s{sM1}, {M_B}\ns_mov_b32 s{sM2}, {MS}\ns_mov_b32 s{sNeg}, {-BS}\ns_mov_b32 s{sB}, {BBASE}")
    a.e("v_cndmask_b32 v3, v11, v1, vcc\nv_cndmask_b32 v4, v11, v2, vcc")
    a.e("v_mov_b32 v5, 1\nv_lshlrev_b32 v6, 2, v0\nv_mul_u32_u24 v7, 12, v0")
    a.e(f"v_cmp_gt_u32 vcc, {LASTP}, v0\nv_lshlrev_b32 v9, {11 if S8 else 10}, v0\ns_nop 0\nv_cndmask_b32 v8, v11, v7, vcc")
    a.e(f"v_cmp_eq_u32 vcc, 1023, v0\nv_mov_b32 v12, {NBIN*1024}\ns_nop 0\nv_cndmask_b32 v10, v11, v12, vcc")
    a.e(f"v_lshrrev_b32 v12, 6, v0\ns_nop 0\nv_readfirstlane_b32 s{sWave}, v12")
    a.e("v_mov_b32 v13, 0\nds_write_b32 v6, v13 offset:%d\nds_write_b32 v6, v13 offset:%d" % (CNT0, CNT1))
    a.e("s_waitcnt lgkmcnt(0)")
    srd(a, S_IN, 4, T*4); srd(a, S_OUT, 6, T*4); srd(a, S_ANG, 28, T*2); srd(a, S_REC, 30, NTILE*TS*6)
    a.e(f"s_add_u32 s30, s30, {OFFS_OFF}\ns_addc_u32 s31, s31, 0")
    O8 = opt.get("o8", 0) and opt.get("p1v", 1) == 2
    srd(a, S_OFF, 30, (NBIN//2+1)*2048 if O8 else (NBIN+1)*512*2)
    def warm():
        if not opt.get("p1_nom"):
            srd(a, 48, 74, E*32)
            a.e("s_mul_i32 s46, s2, 391\nv_add_u32 v126, s46, v0\nv_lshlrev_b32 v126, 7, v126")
            a.e("v_cmp_gt_u32 vcc, 391, v0\ns_and_saveexec_b64 s[54:55], vcc\nbuffer_load_dword v125, v126, s[48:51], 0 offen\ns_mov_b64 exec, s[54:55]")
        if opt.get("p1_wm", 0) >= 2:
            lw = a.label("P1WD")
            a.e(f"s_cmp_lg_u32 s{sWave}, 15\ns_cbranch_scc1 {lw}")
            srd(a, 48, 62, E*2)
            a.e("s_mul_i32 s46, s2, 25\nv_and_b32 v126, 63, v0\nv_add_u32 v126, s46, v126\nv_lshlrev_b32 v126, 7, v126")
            a.e("s_mov_b64 exec, 0x1ffffff\nbuffer_load_dword v125, v126, s[48:51], 0 offen\ns_mov_b64 exec, -1")
            a.e(f"{lw}:")
            lw = a.label("P1WW")
            a.e(f"s_cmp_lg_u32 s{sWave}, 14\ns_cbranch_scc1 {lw}\ns_cmp_ge_u32 s2, 8\ns_cbranch_scc1 {lw}")
            a.e("v_and_b32 v126, 63, v0\nv_lshlrev_b32 v126, 7, v126")
            for base, nb in ((72, 16), (64, 256), (66, 768), (68, 512), (70, 512)):
                srd(a, 48, base, nb)
                a.e("buffer_load_dword v125, v126, s[48:51], 0 offen")
            a.e(f"{lw}:")
    if opt.get("p1_wm") and not opt.get("p1_wl", 0): warm()
    a.e("s_barrier")

    def set_tile(expr_add):
        a.e(f"s_add_u32 s{sTile}, s2, {expr_add}")
        a.e(f"s_mul_i32 s{sTI}, s{sTile}, {TS*4}\ns_mul_i32 s{sTA}, s{sTile}, {TS*2}")
    V2 = opt.get("p1v", 1) == 2
    sNI, sNA = 47, 52
    def issue_quad(j):
        vo = "v1" if j < 6 else "v3"; va = "v2" if j < 6 else "v4"
        a.e(f"s_add_u32 s{sT0}, s{sTI}, {j*16384}\ns_add_u32 s{sT1}, s{sTA}, {j*8192}")
        a.e(f"buffer_load_dwordx4 {vr(O(j),4)}, {vo}, s[{S_OUT}:{S_OUT+3}], s{sT0} offen{ntflag}")
        a.e(f"buffer_load_dwordx4 {vr(I(j),4)}, {vo}, s[{S_IN}:{S_IN+3}], s{sT0} offen{ntflag}")
        a.e(f"buffer_load_dwordx2 {vr(G(j),2)}, {va}, s[{S_ANG}:{S_ANG+3}], s{sT1} offen{ntflag}")
    def issue_O(j):
        vo = "v1" if j < 6 else "v3"
        a.e(f"s_add_u32 s{sT0}, s{sNI}, {j*16384}")
        a.e(f"buffer_load_dwordx4 {vr(O(j),4)}, {vo}, s[{S_OUT}:{S_OUT+3}], s{sT0} offen{ntflag}")
    def issue_IG(j):
        vo = "v1" if j < 6 else "v3"; va = "v2" if j < 6 else "v4"
        a.e(f"s_add_u32 s{sT0}, s{sNI}, {j*16384}\ns_add_u32 s{sT1}, s{sNA}, {j*8192}")
        a.e(f"buffer_load_dwordx4 {vr(I(j),4)}, {vo}, s[{S_IN}:{S_IN+3}], s{sT0} offen{ntflag}")
        a.e(f"buffer_load_dwordx2 {vr(G(j),2)}, {va}, s[{S_ANG}:{S_ANG+3}], s{sT1} offen{ntflag}")
    def finalize(j, nxt):
        for k in range(4):
            a.e(f"v_lshl_or_b32 v{RK(j)+k}, v{O(j)+k}, 16, v{RK(j)+k}")
        if nxt: issue_O(j)

    def guard_last(begin):
        if begin:
            lab = a.label("P1_SKIPQ"); guard_last.lab = lab
            a.e(f"v_cmp_gt_u32 vcc, {LASTQ}, v0\ns_and_saveexec_b64 s[44:45], vcc\ns_cbranch_execz {lab}")
        else:
            a.e(f"{guard_last.lab}:\ns_mov_b64 exec, s[44:45]")

    def convert(j, cnt, younger, nxt=False):
        a.e(f"s_waitcnt vmcnt({younger})")
        if V2 and j >= 1:
            a.e("s_waitcnt lgkmcnt(0)")
            finalize(j-1, nxt)
        if j == 6: guard_last(True)
        t = T0
        for k in range(4):
            o, i = O(j)+k, I(j)+k
            a.e(f"v_mul_hi_u32_u24 v{t}, s{sM1}, v{o}")
            a.e(f"v_mul_hi_u32_u24 v{t+1}, s{sM2}, v{i}")
            a.e(f"v_mad_i32_i24 v{t+2}, v{t}, s{sNeg}, v{o}")
            a.e(f"v_lshl_add_u32 v{t+1}, v{t+1}, 8, v{t}")
            a.e(f"v_and_b32 v{t+3}, 15, v{t+2}")
            a.e(f"v_lshlrev_b32 v{o}, 2, v{t+1}")
            a.e(f"v_lshl_or_b32 v{t+3}, v{i}, 5, v{t+3}")
            a.e(f"v_lshrrev_b32 v{t+2}, 4, v{t+2}")
            a.e(f"ds_add_rtn_u32 v{RK(j)+k}, v{o}, v5 offset:{cnt}")
            a.e(f"v_lshl_or_b32 v{i}, v{t+2}, 24, v{t+3}")
        if j == 6: guard_last(False)

    def prefix(cnt, first=True):
        x, cc, y, w, c1 = T0, T0+1, T0+2, T0+3, T0+5
        p0, p1_ = T0+4, T0+5
        a.e("s_waitcnt lgkmcnt(0)")
        if V2: finalize(6, first)
        a.e("s_barrier")
        if S8:
            a.e(f"v_lshlrev_b32 v{T0+6}, 3, v0\nds_read_b64 v[{p0}:{p1_}], v{T0+6}")
        else:
            a.e(f"ds_read_b32 v{cc}, v6 offset:{cnt}")
        a.e(f"v_lshrrev_b32 v{w}, 4, v0\nv_and_b32 v{w}, 0xfc, v{w}")
        if S8:
            a.e(f"s_waitcnt lgkmcnt(0)\nv_add_u32 v{cc}, v{p0}, v{p1_}\nv_mov_b32 v{x}, v{cc}")
        else:
            a.e(f"s_waitcnt lgkmcnt(0)\nv_mov_b32 v{x}, v{cc}")
        for sh in (1, 2, 4, 8):
            a.e(f"s_nop 1\nv_add_u32_dpp v{x}, v{x}, v{x} row_shr:{sh} row_mask:0xf bank_mask:0xf")
        a.e(f"s_nop 1\nv_add_u32_dpp v{x}, v{x}, v{x} row_bcast:15 row_mask:0xa bank_mask:0xf")
        a.e(f"s_nop 1\nv_add_u32_dpp v{x}, v{x}, v{x} row_bcast:31 row_mask:0xc bank_mask:0xf")
        a.e(f"s_mov_b32 exec_lo, 0\ns_brev_b32 exec_hi, 1")
        a.e(f"ds_write_b32 v{w}, v{x} offset:{WSUM}")
        a.e("s_mov_b64 exec, -1")
        a.e("s_waitcnt lgkmcnt(0)\ns_barrier")
        a.e(f"v_and_b32 v{y}, 15, v0\nv_lshlrev_b32 v{y}, 2, v{y}\nds_read_b32 v{y}, v{y} offset:{WSUM}")
        a.e(f"s_waitcnt lgkmcnt(0)\nv_mov_b32 v{w}, v{y}")
        for sh in (1, 2, 4, 8):
            a.e(f"s_nop 1\nv_add_u32_dpp v{w}, v{w}, v{w} row_shr:{sh} row_mask:0xf bank_mask:0xf")
        a.e(f"v_sub_u32 v{w}, v{w}, v{y}\ns_nop 0\nv_readlane_b32 s{sT2}, v{w}, s{sWave}")
        a.e(f"v_sub_u32 v{y}, v{x}, v{cc}\ns_nop 1\nv_add_u32 v{y}, s{sT2}, v{y}")
        a.e(f"v_add_u32 v{x}, s{sT2}, v{x}")
        a.e(f"s_lshl_b32 s{sT0}, s{sTile}, 1")
        if S8:
            a.e(f"v_add_u32 v{p1_}, v{y}, v{p0}\nv_mov_b32 v{p0}, v{y}")
            a.e(f"ds_write_b64 v{T0+6}, v[{p0}:{p1_}]")
            v9 = "v11" if opt.get("p1_nooff") else "v9"
            if V2:
                if first:
                    a.e(f"v_mov_b32 v122, v{p0}\nv_mov_b32 v123, v{p1_}\nv_mov_b32 v124, v{x}")
                else:
                    a.e(f"s_lshl_b32 s53, s2, {3 if O8 else 2}")
                    a.e(f"v_lshl_or_b32 v122, v{p0}, 16, v122\nv_lshl_or_b32 v123, v{p1_}, 16, v123\nv_lshl_or_b32 v124, v{x}, 16, v124")
                    if not opt.get("p1_late", 1):
                        a.e(f"buffer_store_dword v122, {v9}, s[{S_OFF}:{S_OFF+3}], s53 offen")
                        a.e(f"buffer_store_dword v123, {v9}, s[{S_OFF}:{S_OFF+3}], s53 offen offset:1024")
                        a.e(f"buffer_store_dword v124, v10, s[{S_OFF}:{S_OFF+3}], s53 offen")
            else:
                a.e(f"buffer_store_short v{p0}, {v9}, s[{S_OFF}:{S_OFF+3}], s{sT0} offen")
                a.e(f"buffer_store_short v{p1_}, {v9}, s[{S_OFF}:{S_OFF+3}], s{sT0} offen offset:1024")
        else:
            a.e(f"ds_write_b32 v6, v{y} offset:{cnt}")
            a.e(f"buffer_store_short v{y}, v9, s[{S_OFF}:{S_OFF+3}], s{sT0} offen")
        if not V2: a.e(f"buffer_store_short v{x}, v10, s[{S_OFF}:{S_OFF+3}], s{sT0} offen")
        a.e("s_waitcnt lgkmcnt(0)\ns_barrier")

    def scatter(cnt, next_loads):
        st = lambda j: T0 + 4*(j & 1)
        tmp = T0 + 8
        def reads(j):
            if j == 6: guard_last(True)
            for k in range(4):
                if V2:
                    a.e(f"v_lshrrev_b32 v{st(j)+k}, 16, v{RK(j)+k}")
            for k in range(4):
                if V2: a.e(f"ds_read_b32 v{st(j)+k}, v{st(j)+k} offset:{cnt}")
                else: a.e(f"ds_read_b32 v{st(j)+k}, v{O(j)+k} offset:{cnt}")
            if j == 6: guard_last(False)
        reads(0)
        for j in range(NQ):
            if j+1 < NQ:
                reads(j+1)
                a.e("s_waitcnt lgkmcnt(4)" if j+1 < 6 else "s_waitcnt lgkmcnt(0)")
            else:
                a.e("s_waitcnt lgkmcnt(0)")
            if j == 6: guard_last(True)
            for k in range(4):
                p = st(j)+k
                if V2: a.e(f"v_add_u32_sdwa v{p}, v{p}, v{RK(j)+k} dst_sel:DWORD dst_unused:UNUSED_PAD src0_sel:DWORD src1_sel:WORD_0")
                else: a.e(f"v_add_u32 v{p}, v{p}, v{RK(j)+k}")
                g = G(j) + (k >> 1)
                if opt.get("p1_aos", 0):
                    a.e(f"v_and_b32 v{tmp+2}, 1, v{p}\nv_mul_u32_u24 v{p}, 6, v{p}")
                    a.e(f"v_mad_i32_i24 v{tmp}, v{tmp+2}, -2, v{p}\nv_mad_i32_i24 v{tmp+1}, v{tmp+2}, -4, v{p}")
                    a.e(f"ds_write_b32 v{tmp}, v{I(j)+k} offset:{ABASE}")
                    a.e(f"ds_write_b16{'_d16_hi' if (k & 1) else ''} v{tmp+1}, v{g} offset:{ABASE+8}")
                else:
                    a.e(f"v_lshlrev_b32 v{tmp}, 2, v{p}")
                    a.e(f"v_lshl_add_u32 v{tmp+1}, v{p}, 1, s{sB}")
                    a.e(f"ds_write_b32 v{tmp}, v{I(j)+k} offset:{ABASE}")
                    a.e(f"ds_write_b16{'_d16_hi' if (k & 1) else ''} v{tmp+1}, v{g}")
            if j == 6: guard_last(False)
            if next_loads:
                if V2: issue_IG(j)
                else: issue_quad(j)
            elif V2 and opt.get("p1_late", 1):
                v9 = "v11" if opt.get("p1_nooff") else "v9"
                if j == 0:
                    if O8: a.e(f"buffer_store_dwordx2 v[122:123], {v9}, s[{S_OFF}:{S_OFF+3}], s53 offen{oflag}")
                    else: a.e(f"buffer_store_dword v122, {v9}, s[{S_OFF}:{S_OFF+3}], s53 offen{oflag}")
                if j == 1 and opt.get("p1_wm") and opt.get("p1_wl", 0): warm()
                if j == 3 and not O8: a.e(f"buffer_store_dword v123, {v9}, s[{S_OFF}:{S_OFF+3}], s53 offen offset:1024{oflag}")
                if j == 5: a.e(f"buffer_store_dword v124, v10, s[{S_OFF}:{S_OFF+3}], s53 offen")
        a.e("s_waitcnt lgkmcnt(0)\ns_barrier")

    NCH = (TS*6//16 + 1023)//1024
    LASTC = TS*6//16 - (NCH-1)*1024
    def copyout_aos(final=False):
        if final: regs = [24 + 4*q for q in range(NCH)]
        else: regs = [94 + 4*q for q in range(7)] + [16, 20, 12]
        av, at = 125, 126
        a.e(f"v_add_u32 v{av}, {ABASE}, v1\nv_add_u32 v126, {ABASE+65536}, v1\nv_add_u32 v127, {ABASE+131072}, v1")
        a.e(f"v_cmp_gt_u32 vcc, {LASTC}, v0\nv_mov_b32 v8, v11\ns_nop 0\nv_cndmask_b32 v8, v8, v1, vcc")
        it = 0
        G1 = opt.get("p1_cg", 5)
        while it < NCH:
            n = min(G1, NCH-it)
            for q in range(n):
                i2 = it+q
                base = [125, 126, 127][i2 // 4]
                a.e(f"ds_read_b128 {vr(regs[i2],4)}, v{base} offset:{(i2 % 4)*16384}")
            for q in range(n):
                i2 = it+q
                a.e(f"s_waitcnt lgkmcnt({n-1-q})")
                a.e(f"s_add_u32 s{sT0}, s{sTR}, {i2*16384}")
                vo = "v1" if i2 < NCH-1 else "v8"
                if opt.get("p1_nost"): vo = "v11"
                a.e(f"buffer_store_dwordx4 {vr(regs[i2],4)}, {vo}, s[{S_REC}:{S_REC+3}], s{sT0} offen")
            it += n
        a.e("s_nop 3")
    def copyout(final=False):
        if opt.get("p1_aos", 0): return copyout_aos(final)
        tr = lambda q: 94 + 4*q
        av, bv = T0, T0+1
        a.e(f"v_lshlrev_b32 v{av}, 3, v0\nv_add_u32 v{av}, {ABASE}, v{av}")
        a.e(f"v_add_u32 v{bv}, s{sB}, v6")
        it = 0
        while it < NPI:
            n = min(7, NPI-it)
            for q in range(n):
                i2 = it+q
                if i2*8192 > 65535-8:
                    a.e(f"v_add_u32 v{T0+2}, {i2*8192}, v{av}")
                    a.e(f"ds_read_b64 {vr(tr(q),2)}, v{T0+2}")
                else:
                    a.e(f"ds_read_b64 {vr(tr(q),2)}, v{av} offset:{i2*8192}")
                a.e(f"ds_read_b32 v{tr(q)+2}, v{bv} offset:{i2*4096}")
            for q in range(n):
                i2 = it+q
                a.e(f"s_waitcnt lgkmcnt({2*(n-1-q)})")
                a.e(f"s_add_u32 s{sT0}, s{sTR}, {i2*12288}")
                vo = "v7" if i2 < NPI-1 else "v8"
                if opt.get("p1_nost"): vo = "v11"
                a.e(f"buffer_store_dwordx3 {vr(tr(q),3)}, {vo}, s[{S_REC}:{S_REC+3}], s{sT0} offen" + ["", " nt", " sc1", " sc0 sc1", " sc0", " sc1 nt"][opt.get("p1_st", 0)])
            it += n
            if it < NPI:
                a.e("s_nop 1")
    if V2:
        PR = opt.get("p1prof")
        nst = [0]
        def stamp():
            if not PR: return
            k = nst[0]; nst[0] += 1
            a.e(f"s_memtime s[{60+2*k}:{61+2*k}]")
        stamp()
        a.e(f"s_lshl_b32 s{sTile}, s2, 1")
        a.e(f"s_mul_i32 s{sTI}, s{sTile}, {TS*4}\ns_mul_i32 s{sTA}, s{sTile}, {TS*2}")
        a.e(f"s_add_u32 s{sNI}, s{sTI}, {TS*4}\ns_add_u32 s{sNA}, s{sTA}, {TS*2}")
        PP = opt.get("p1_prio", 0)
        if PP: a.e("s_setprio 3")
        for j in range(NQ):
            issue_quad(j)
            if PP == 1 and j in (1, 3, 5): a.e(f"s_setprio {2 - (j-1)//2}")
            if PP == 2 and j in (0, 1, 2): a.e(f"s_setprio {2 - j}")
        stamp()
        for j in range(NQ):
            convert(j, CNT0, 3*(6-j) + max(j-1, 0), True)
            if j == 0: stamp()
        stamp()
        prefix(CNT0, True)
        stamp()
        a.e(f"s_mul_i32 s{sTR}, s{sTile}, {TS*6}")
        scatter(CNT0, True)
        stamp()
        a.e(f"v_lshlrev_b32 v{T0+6}, 3, v0\nv_mov_b32 v{T0+4}, 0\nv_mov_b32 v{T0+5}, 0\nds_write_b64 v{T0+6}, v[{T0+4}:{T0+5}]")
        if opt.get("p1_eb", 1):
            a.e("s_waitcnt lgkmcnt(0)\ns_barrier")
            copyout()
        else:
            copyout()
            a.e("s_waitcnt lgkmcnt(0)\ns_barrier")
        stamp()
        for j in range(NQ):
            convert(j, CNT0, 2*(6-j) + (0 if opt.get("p1_safe", 1) else (NCH if opt.get("p1_aos", 0) else NPI) - 1), False)
            if j == 0: stamp()
        stamp()
        prefix(CNT0, False)
        stamp()
        scatter(CNT0, False)
        stamp()
        a.e(f"s_add_u32 s{sTR}, s{sTR}, {TS*6}")
        copyout(True)
        stamp()
        if PR:
            a.e("s_waitcnt vmcnt(0)")
            stamp()
            a.e("s_waitcnt lgkmcnt(0)")
            sk = a.label("P1PR")
            a.e(f"s_and_b32 s58, s2, 63\ns_cmp_lg_u32 s58, 0\ns_cbranch_scc1 {sk}\ns_cmp_lg_u32 s{sWave}, {opt.get('p1pw', 0)}\ns_cbranch_scc1 {sk}")
            a.e("s_load_dwordx2 s[58:59], s[0:1], 96\ns_waitcnt lgkmcnt(0)")
            a.e("s_lshr_b32 s57, s2, 6\ns_lshl_b32 s57, s57, 6\nv_mov_b32 v12, s57")
            for k in range(nst[0]):
                a.e(f"s_sub_u32 s56, s{60+2*k}, s60\nv_mov_b32 v13, s56\nglobal_store_dword v12, v13, s[58:59] offset:{4*k}")
            a.e(f"{sk}:")
    else:
        set_tile(0)
        for j in range(NQ): issue_quad(j)
        for j in range(NQ): convert(j, CNT0, 3*(6-j))
        prefix(CNT0)
        a.e(f"s_mul_i32 s{sTR}, s{sTile}, {TS*6}")
        a.e(f"s_mov_b32 s46, s{sTR}")
        set_tile(NTILE//2)
        scatter(CNT0, True)
        a.e(f"s_mov_b32 s{sTR}, s46")
        C1 = CNT0 if S8 else CNT1
        if S8:
            a.e(f"v_lshlrev_b32 v{T0+6}, 3, v0\nv_mov_b32 v{T0+4}, 0\nv_mov_b32 v{T0+5}, 0\nds_write_b64 v{T0+6}, v[{T0+4}:{T0+5}]")
        copyout()
        if S8: a.e("s_waitcnt lgkmcnt(0)\ns_barrier")
        for j in range(NQ): convert(j, C1, 3*(6-j) + NPI)
        prefix(C1)
        scatter(C1, False)
        a.e(f"s_mul_i32 s{sTR}, s{sTile}, {TS*6}")
        copyout()
    if opt.get("rt2"):
        a.e("s_waitcnt vmcnt(0) lgkmcnt(0)\ns_memrealtime s[56:57]\ns_load_dwordx2 s[58:59], s[0:1], 104\ns_waitcnt lgkmcnt(0)")
        a.e(f"s_add_u32 s58, s58, {121<<20}\ns_addc_u32 s59, s59, 0\ns_lshl_b32 s60, s2, 8\ns_lshl_b32 s61, s{sWave}, 4\ns_add_u32 s60, s60, s61")
        a.e("v_mov_b32 v12, s60\nv_mov_b32 v16, s54\nv_mov_b32 v17, s55\nv_mov_b32 v18, s56\nv_mov_b32 v19, s57\nglobal_store_dwordx4 v12, v[16:19], s[58:59]")
    a.e("P1_END:\ns_endpgm")

def kd(name, vgpr, sgpr, accum):
    return f""".amdhsa_kernel {name}
  .amdhsa_next_free_vgpr {vgpr}
  .amdhsa_next_free_sgpr {sgpr}
  .amdhsa_accum_offset {accum}
  .amdhsa_group_segment_fixed_size 0
  .amdhsa_kernarg_size 112
  .amdhsa_user_sgpr_count 2
  .amdhsa_user_sgpr_kernarg_segment_ptr 1
  .amdhsa_system_sgpr_workgroup_id_x 1
  .amdhsa_float_denorm_mode_32 3
  .amdhsa_float_denorm_mode_16_64 3
.end_amdhsa_kernel
"""
```
